```python
import torch

def _softmax(x, axis=-1):
    return torch.softmax(x, dim=axis)
def _gelu(x):
    return torch.nn.functional.gelu(x, approximate="tanh")
def _silu(x):
    return torch.nn.functional.silu(x)
def _sigmoid(x):
    return torch.sigmoid(x)
def _layernorm(x, axis=-1, eps=1e-5):
    m = x.mean(dim=axis, keepdim=True)
    v = x.var(dim=axis, keepdim=True, unbiased=False)
    return (x - m) / torch.sqrt(v + eps)
def _scatter_add(tgt, idx, src, axis=0):
    return tgt.clone().index_add_(axis, idx, src)
def _segment_sum(src, seg, n):
    out = torch.zeros((n,) + src.shape[1:], dtype=src.dtype)
    return out.index_add_(0, seg, src)
def _pad(x, pw):
    flat = tuple(v for pair in reversed(pw) for v in pair)
    return torch.nn.functional.pad(x, flat)

kernel_name = 'interleave_layers__sliding_block_cached__glu_gated_glu__decode'

def setup_inputs():

    _w = (lambda a: (lambda t: t.to(torch.bfloat16) if t.is_floating_point() else t)(torch.as_tensor(a)))
    def _A_setup():
        B, Sq, D = 8, 1, 448
        Hq, Hkv, Sk, Dh = 16, 8, 4096, 256
        assert Hq % Hkv == 0, (Hq, Hkv)
        return {
            "x": _w((lambda *s: torch.randn(*s, dtype=torch.bfloat16) * 0.05)(B, Sq, D)),
            "k_cache": _w((lambda *s: torch.randn(*s, dtype=torch.bfloat16) * 1.6)(B, Hkv, Sk, Dh)),
            "v_cache": _w((lambda *s: torch.randn(*s, dtype=torch.bfloat16) * 1.6)(B, Hkv, Sk, Dh)),
            "wq": _w((lambda *s: torch.randn(*s, dtype=torch.bfloat16) * 1.6)(D, Hq * Dh) * (D ** -0.5)),
            "wo": _w((lambda *s: torch.randn(*s, dtype=torch.bfloat16) * 1.6)(Hq * Dh, D) * ((Hq * Dh) ** -0.5)),
        }
    _A_in = _A_setup()

    def _B_setup():
        B, S, D, F = 8, 1, 448, 1792
        return {
            "x": _w((lambda *s: torch.randn(*s, dtype=torch.bfloat16) * 0.05)(B, S, D)),
            "w_gate": _w((lambda *s: torch.randn(*s, dtype=torch.bfloat16) * 0.05)(D, F)),
            "w_up": _w((lambda *s: torch.randn(*s, dtype=torch.bfloat16) * 0.05)(D, F)),
            "w_down": _w((lambda *s: torch.randn(*s, dtype=torch.bfloat16) * 0.05)(F, D)),
        }
    _B_in = _B_setup()

    return {
        "A_x": _A_in["x"],
        "A_k_cache": _A_in["k_cache"],
        "A_v_cache": _A_in["v_cache"],
        "A_wq": _A_in["wq"],
        "A_wo": _A_in["wo"],
        "B_x": _B_in["x"],
        "B_w_gate": _B_in["w_gate"],
        "B_w_up": _B_in["w_up"],
        "B_w_down": _B_in["w_down"],
    }

def reference(A_x, A_k_cache, A_v_cache, A_wq, A_wo, B_x, B_w_gate, B_w_up, B_w_down):
    def _A_ref(x, k_cache, v_cache, wq, wo):
        B, Sq, D = x.shape
        Hq, Dh = 16, 256
        Hkv, Sk = k_cache.shape[1], k_cache.shape[2]
        W = min(4096, max(256, Sk // 4))
        rep = Hq // Hkv
        q = (lambda x, *d: x.permute(*d))((x @ wq).reshape(B, Sq, Hq, Dh), 0, 2, 1, 3)
        k = (lambda x, n, axis: torch.repeat_interleave(x, n, dim=axis))(k_cache[:, :, Sk - W:, :], rep, axis=1)
        v = (lambda x, n, axis: torch.repeat_interleave(x, n, dim=axis))(v_cache[:, :, Sk - W:, :], rep, axis=1)
        scores = torch.einsum("bhqd,bhkd->bhqk", q, k) * (Dh ** -0.5)
        p = _softmax(scores, axis=-1)
        o = torch.einsum("bhqk,bhkd->bhqd", p, v)
        return (lambda x, *d: x.permute(*d))(o, 0, 2, 1, 3).reshape(B, Sq, Hq * Dh) @ wo

    def _B_ref(x, w_gate, w_up, w_down):
        g = torch.einsum("bsd,df->bsf", x, w_gate)
        u = torch.einsum("bsd,df->bsf", x, w_up)
        h = _sigmoid(g) * u
        return torch.einsum("bsf,fd->bsd", h, w_down)

    x = A_x
    x = x + _A_ref(_layernorm(x, axis=-1), A_k_cache, A_v_cache, A_wq, A_wo)
    x = x + _B_ref(_layernorm(x, axis=-1), B_w_gate, B_w_up, B_w_down)
    x = x + _A_ref(_layernorm(x, axis=-1), A_k_cache, A_v_cache, A_wq, A_wo)
    x = x + _B_ref(_layernorm(x, axis=-1), B_w_gate, B_w_up, B_w_down)
    return x
```

```python
import re

def _regs(tok, kind):
    tok = tok.strip()
    tok = tok.lstrip('-')
    if tok.startswith('abs('): tok = tok[4:-1]
    if tok.startswith('|'): tok = tok.strip('|')
    m = re.fullmatch(kind + r'(\d+)', tok)
    if m: return {int(m.group(1))}
    m = re.fullmatch(kind + r'\[(\d+):(\d+)\]', tok)
    if m: return set(range(int(m.group(1)), int(m.group(2)) + 1))
    if kind == 's':
        if tok == 'vcc': return {106, 107}
        if tok == 'vcc_lo': return {106}
        if tok == 'vcc_hi': return {107}
        if tok == 'm0': return {124}
        if tok == 'exec': return {126, 127}
    return set()

TRANS = ('v_exp_f32', 'v_log_f32', 'v_rcp_f32', 'v_rsq_f32', 'v_sqrt_f32', 'v_sin_f32', 'v_cos_f32')

class I:
    def __init__(self, text):
        self.text = text
        t = text.split(';')[0].strip()
        parts = t.split(None, 1)
        self.op = parts[0]
        rest = parts[1] if len(parts) > 1 else ''
        ops = re.split(r',\s*(?![^\[]*\])', rest)
        self.mods = ''
        if ops:
            last = ops[-1].split(None, 1)
            ops[-1] = last[0] if last else ''
            self.mods = last[1] if len(last) > 1 else ''
        self.ops = ops
        op = self.op
        self.states = 1
        if op == 's_nop': self.states = int(ops[0], 0) + 1
        self.vw = set(); self.vr = set(); self.sw = set(); self.sr = set()
        self.mfma = op.startswith('v_mfma') or op.startswith('v_smfmac')
        self.valu = op.startswith('v_') and not self.mfma
        self.dot = op.startswith('v_dot')
        self.trans = any(op.startswith(x) for x in TRANS)
        self.dpp = '_dpp' in op or 'quad_perm' in self.mods or 'row_' in self.mods
        self.perm = op.startswith('v_permlane')
        self.rl = op.startswith('v_readlane') or op.startswith('v_readfirstlane')
        self.vmem = op.startswith('global_') or op.startswith('buffer_') or op.startswith('flat_')
        self.ds = op.startswith('ds_')
        self.salu = op.startswith('s_')
        self.ab = set(); self.c = set(); self.wide_store = set(); self.ldsdma = False
        V = lambda tok: _regs(tok, 'v'); S = lambda tok: _regs(tok, 's')
        if self.mfma:
            self.vw = V(ops[0]); self.ab = V(ops[1]) | V(ops[2]); self.c = V(ops[3])
            if op.startswith('v_smfmac'):
                self.ab |= self.c; self.c = V(ops[0])
            self.vr = self.ab | self.c
            self.passes = 8 if '32x32' in op else 4
            if op.endswith('_f32') and 'x4_f32' in op: self.passes = 8
        elif self.perm:
            self.vw = V(ops[0]) | V(ops[1]); self.vr = set(self.vw)
        elif op.startswith('v_cmp') or self.rl:
            self.sw = S(ops[0])
            for o in ops[1:]: self.vr |= V(o); self.sr |= S(o)
        elif self.valu:
            self.vw = V(ops[0])
            for o in ops[1:]: self.vr |= V(o); self.sr |= S(o)
            if op.startswith(('v_fmac', 'v_dot2c', 'v_writelane')) or (self.dpp): self.vr |= self.vw
            if op.startswith('v_cndmask') and len(ops) == 3: self.sr |= {106, 107}
        elif self.ds:
            if op.startswith('ds_read'):
                self.vw = V(ops[0]); self.vr = V(ops[1])
            else:
                for o in ops: self.vr |= V(o)
        elif self.vmem:
            if '_lds_' in op:
                self.ldsdma = True
                for o in ops: self.vr |= V(o); self.sr |= S(o)
            elif '_load' in op:
                self.vw = V(ops[0])
                for o in ops[1:]: self.vr |= V(o); self.sr |= S(o)
            else:
                for o in ops: self.vr |= V(o); self.sr |= S(o)
                if op.endswith('x4') or op.endswith('x3'): self.wide_store = V(ops[1])
        elif self.salu and ops and ops[0]:
            if not op.startswith(('s_cmp', 's_cbranch', 's_branch', 's_waitcnt', 's_nop', 's_barrier', 's_sleep', 's_setprio', 's_bitcmp', 's_endpgm')):
                self.sw = S(ops[0])

def need(p, c):
    n = 0
    if p.valu and not p.dot:
        if c.mfma and (p.vw & c.vr): n = max(n, 2)
        if c.dpp and (p.vw & c.vr): n = max(n, 2)
        if c.perm and (p.vw & c.vr): n = max(n, 2)
        if c.rl and (p.vw & c.vr): n = max(n, 1)
        if p.trans and c.valu and not c.trans and (p.vw & c.vr): n = max(n, 1)
        if p.trans and (c.vmem or c.ds) and (p.vw & c.vr): n = max(n, 1)
        if p.sw:
            if c.valu and (p.sw & c.sr): n = max(n, 4 if (c.rl or c.op.startswith('v_writelane')) else 2)
            if c.vmem and (p.sw & c.sr): n = max(n, 5)
    if p.dot:
        if (p.vw & (c.vr | c.vw)):
            if c.op == p.op and not (p.vw & (_regs(c.ops[1], 'v') | _regs(c.ops[2], 'v'))): pass
            else: n = max(n, 3)
    if p.mfma:
        big = {4: 8, 8: 12}[p.passes]; ov = {4: 6, 8: 10}[p.passes]; war = {4: 3, 8: 7}[p.passes]
        if c.mfma:
            if p.vw & c.ab: n = max(n, big)
            if (p.vw & c.c) and p.vw != c.c: n = max(n, ov)
            if (p.vw & c.vw) and p.vw != c.c: n = max(n, big)
        else:
            if p.vw & (c.vr | c.vw): n = max(n, big)
            if c.valu and (p.c & c.vw): n = max(n, war)
    if p.wide_store and (p.wide_store & c.vw): n = max(n, 2 if c.valu else 1)
    if p.salu and 124 in p.sw and c.ldsdma: n = max(n, 1)
    return n

class Asm:
    def __init__(self):
        self.out = []
        self.hists = [[]]
        self.snap = {}
        self.nlab = 0
        self.after = {}
        self.open = []
    def raw(self, s): self.out.append(s)
    def newlabel(self, p='L'):
        self.nlab += 1; return f"{p}_{self.nlab}"
    def label(self, name):
        self.out.append(f"{name}:")
        self.after[name] = []; self.open.append(name)
        for h in self.snap.pop(name, []): self.hists.append(list(h))
        if not self.hists: self.hists = [[]]
    def _push(self, ins):
        for n in list(self.open):
            self.after[n].append(ins)
            if sum(x.states for x in self.after[n]) >= 24 or ins.op in ('s_branch', 's_endpgm'): self.open.remove(n)
        nh = []
        for h in self.hists:
            h.append(ins)
            tot = 0; k = len(h)
            while k > 0 and tot < 24:
                k -= 1; tot += h[k].states
            h = h[k:]
            if not any(len(x) == len(h) and all(a is b for a, b in zip(x, h)) for x in nh): nh.append(h)
        self.hists = nh
    def e(self, text):
        for line in text.strip().split('\n'):
            line = line.strip()
            if not line or line.startswith(';'):
                if line: self.out.append('  ' + line)
                continue
            if line.endswith(':') and ' ' not in line:
                self.label(line[:-1]); continue
            ins = I(line)
            pad = 0
            for h in self.hists:
                dist = 0
                for p in reversed(h):
                    r = need(p, ins)
                    if r > dist: pad = max(pad, r - dist)
                    dist += p.states
            if (ins.op.startswith('s_cbranch') or ins.op == 's_branch') and ins.ops[0] in self.after:
                for h in self.hists:
                    dist = 1
                    for p in reversed(h):
                        d2 = dist
                        for c in self.after[ins.ops[0]]:
                            r = need(p, c)
                            if r > d2: pad = max(pad, r - d2)
                            d2 += c.states
                        dist += p.states
            if pad:
                nop = I(f"s_nop {pad-1}")
                self.out.append(f"  s_nop {pad-1}")
                self._push(nop)
            self.out.append('  ' + line)
            self._push(ins)
            if ins.op.startswith('s_cbranch') or ins.op == 's_branch':
                self.snap.setdefault(ins.ops[0], []).extend([list(h) for h in self.hists])
                if ins.op == 's_branch': self.hists = []
            if ins.op == 's_endpgm': self.hists = []
    def text(self): return '\n'.join(self.out) + '\n'
```

```python
import sys
sys.path.insert(0, "dev")
from asmlib import Asm

KNAME = "interleave_layers__sliding_block_cached__glu_gated_glu__decode_kernel"
REF = "interleave_layers__sliding_block_cached__glu_gated_glu__decode.s.ref"

K16 = 16384; K8 = 8192
W_Q = 0x00000; W_O = 0x10000; W_M = 0x50000; W_D1 = 0x80000; W_A1 = 0xF0000; W_Q0 = 0x140000
ITSTRIDE = 0x400000
W_STAMP = 0x800000
L_WQ = 0; L_WO = 14336; L_WG = 30720; L_WU = 37888; L_WD = 45056; L_QS = 52224; L_OC = 53248; L_ML = 69632; L_FL = 69760
LDS_BYTES = 70912
sX, sK, sV, sWQ, sWO, sWG, sWU, sWD, sOUT, sDBG, sWS = 4, 6, 8, 10, 12, 16, 18, 20, 22, 24, 26
sG, sIDX, sWAVE, sFAST, sIT, sSPIN, sXCC, sPAR, sNEAR = 28, 29, 30, 31, 32, 33, 34, 35, 36
sH, sCG, sG3 = 37, 38, 39
sIB = 40
sA, sB, sC = 42, 44, 46
sT0, sT1, sT2, sT3 = 48, 49, 50, 51
sMB = 52
sE0 = 54; sE1 = 56; sE2 = 58; sE3 = 14
sCL = 60; sINV = 61
sD = 62
sQB = 64
sEPS = 66; sNL2E = 67
sSTAMP = 68
def sp(r): return f"s[{r}:{r+1}]"
def vr(r, n=4): return f"v[{r}:{r+n-1}]"
vLANE, vN, vQ, vT = 0, 1, 2, 3
vMASK = 4
vQSR, vOCW, vMLW = 8, 9, 10
vST = 4
pA, pOF, pML, pD1 = 12, 13, 14, 15
pXST, pSST, pXLD, pSLD, pHST, pHLD, pA1, pA1B, pQST, tW32, tGU = range(16, 27)
tW64 = 27
cOCR, cMLR, cOST = 16, 17, 18
vRES = 28
vD = 32
vW = 64
vONE = 120; vCS = 124
vKF = 128; vVF = 192
SPIN_LIMIT = 100000

def gen(stamps=False, nt="nt"):
    a = Asm(); e = a.e
    ool = []
    def stamp(idx):
        if stamps: e(f"s_memrealtime {sp(sSTAMP+2*idx)}")
    def dump_stamps():
        if not stamps: return
        e("s_waitcnt lgkmcnt(0)")
        for k in range(16): e(f"v_writelane_b32 v{vT}, s{sSTAMP+2*k}, {k}")
        e(f"""
        s_lshl_b32 s{sT3}, s2, 3
        s_add_u32 s{sT3}, s{sT3}, s{sWAVE}
        s_lshl_b32 s{sT3}, s{sT3}, 1
        s_add_u32 s{sT3}, s{sT3}, s{sIT}
        s_lshl_b32 s{sT3}, s{sT3}, 6
        s_add_u32 s{sT3}, s{sT3}, {W_STAMP}
        v_lshlrev_b32 v11, 2, v{vLANE}
        v_add_u32 v11, s{sT3}, v11
        s_mov_b64 exec, 0xffff
        global_store_dword v11, v{vT}, {sp(sWS)}
        s_mov_b64 exec, -1
        """)
    def base(dst, src, *adds):
        const = sum(x for x in adds if isinstance(x, int))
        regs = [x for x in adds if not isinstance(x, int)]
        cur = src
        for r in regs + ([const] if const else []):
            e(f"s_add_u32 s{dst}, s{cur}, {r}\ns_addc_u32 s{dst+1}, s{cur+1}, 0"); cur = dst
        if cur == src: e(f"s_mov_b64 {sp(dst)}, {sp(src)}")
    def st_intra(instrs):
        slow = a.newlabel('SLOW'); back = a.newlabel('BACK')
        e(f"s_cmp_eq_u32 s{sFAST}, 0\ns_cbranch_scc1 {slow}")
        for i in instrs: e(i)
        e(f"{back}:")
        ool.append((slow, [i + " sc1" if i.startswith('global_') else i for i in instrs], back))
    def poll(loads, regs, mid=None):
        top = a.newlabel('POLL'); first = a.newlabel('PF')
        if mid:
            for l in loads: e(l)
            mid()
            e(f"s_branch {first}")
        e(f"{top}:")
        for l in loads: e(l)
        e(f"s_add_u32 s{sSPIN}, s{sSPIN}, 1\ns_cmp_gt_u32 s{sSPIN}, {SPIN_LIMIT}\ns_cbranch_scc1 L_exit")
        if mid: e(f"{first}:")
        e("s_waitcnt vmcnt(0)")
        regs = list(regs)
        e(f"v_max3_u32 v{vT}, v{regs[0]}, v{regs[1]}, v{regs[2]}")
        k = 3
        while k < len(regs):
            if k + 1 < len(regs): e(f"v_max3_u32 v{vT}, v{regs[k]}, v{regs[k+1]}, v{vT}"); k += 2
            else: e(f"v_max_u32 v{vT}, v{regs[k]}, v{vT}"); k += 1
        e(f"v_cmp_eq_u32 vcc, -1, v{vT}\ns_cbranch_vccnz {top}")
    def trfrags(dst, addr, offs):
        for i, (o0, o1) in enumerate(offs):
            e(f"ds_read_b64_tr_b16 {vr(dst+4*i,2)}, v{addr} offset:{o0}")
            e(f"ds_read_b64_tr_b16 {vr(dst+4*i+2,2)}, v{addr} offset:{o1}")
    def dma(n, ldsbase, voff, sbase, step):
        for i in range(n):
            e(f"s_mov_b32 m0, {ldsbase + i*1024}")
            e(f"global_load_lds_dwordx4 v{voff}, {sp(sbase)} {nt}")
            if i + 1 < n: e(f"v_add_u32 v{voff}, {step}, v{voff}")
    def kvaddr():
        e(f"""
        s_lshr_b32 s{sT0}, s{sIDX}, 2
        s_lshl_b32 s{sT0}, s{sT0}, 24
        s_lshl_b32 s{sT1}, s{sG}, 21
        s_add_u32 s{sT0}, s{sT0}, s{sT1}
        s_and_b32 s{sT1}, s{sIDX}, 3
        s_lshl_b32 s{sT1}, s{sT1}, 17
        s_add_u32 s{sT0}, s{sT0}, s{sT1}
        s_lshl_b32 s{sT1}, s{sWAVE}, 14
        s_add_u32 s{sT0}, s{sT0}, s{sT1}
        s_add_u32 s{sT0}, s{sT0}, {3072*512}
        ; K lane offset: key = 4*(n%4) + n/4 ; + quad*16
        v_and_b32 v96, 3, v{vN}
        v_lshlrev_b32 v96, 11, v96
        v_lshrrev_b32 v97, 2, v{vN}
        v_lshl_add_u32 v96, v97, 9, v96
        v_lshl_add_u32 v96, v{vQ}, 4, v96
        v_add_u32 v96, s{sT0}, v96            ; K tile 0
        v_add_u32 v97, {K8}, v96              ; K tile 1
        v_lshlrev_b32 v98, 4, v{vN}
        v_lshl_add_u32 v98, v{vQ}, 9, v98
        v_add_u32 v98, s{sT0}, v98
        v_add_u32 v98, 4096, v98
        v_add_u32 v99, {K8}, v98
        """)
    def kvloads():
        for t in range(2):
            for i in range(8):
                e(f"global_load_dwordx4 {vr(vKF+32*t+4*i)}, v{96+t}, {sp(sK)} offset:{64*i} {nt}")
        for t in range(2):
            for r in range(4):
                for c in range(2):
                    e(f"global_load_dwordx4 {vr(vVF+32*t+8*r+4*c)}, v{98+t}, {sp(sV)} offset:{2048*r+256*c-4096} {nt}")
    def common_consts():
        e(f"""
        ; masks: position j = n%8 -> reg j/2, half j%2
        v_and_b32 v100, 1, v{vN}
        v_lshlrev_b32 v100, 4, v100
        v_mov_b32 v101, 0xffff
        v_lshlrev_b32 v101, v100, v101
        v_bfe_u32 v100, v{vN}, 1, 2
        """)
        for r in range(4):
            e(f"v_cmp_eq_u32 vcc, {r}, v100\nv_cndmask_b32 v{vMASK+r}, 0, v101, vcc")
        e(f"""
        v_lshrrev_b32 v100, 3, v{vN}
        v_lshlrev_b32 v{vQSR}, 9, v100
        v_lshl_add_u32 v{vQSR}, v{vQ}, 4, v{vQSR}
        v_add_u32 v{vQSR}, {L_QS}, v{vQSR}
        ; OC write: wave*2048 + (quad/2)*1024 + n*32 + (quad%2)*16   (+512 for c=1)
        v_lshrrev_b32 v101, 1, v{vQ}
        v_lshlrev_b32 v{vOCW}, 10, v101
        v_lshl_add_u32 v{vOCW}, v{vN}, 5, v{vOCW}
        v_and_b32 v101, 1, v{vQ}
        v_lshl_add_u32 v{vOCW}, v101, 4, v{vOCW}
        s_lshl_b32 s{sT1}, s{sWAVE}, 11
        s_add_u32 s{sT1}, s{sT1}, {L_OC}
        v_add_u32 v{vOCW}, s{sT1}, v{vOCW}
        s_lshl_b32 s{sT1}, s{sWAVE}, 3
        s_add_u32 s{sT1}, s{sT1}, {L_ML}
        v_lshlrev_b32 v{vMLW}, 6, v100
        v_add_u32 v{vMLW}, s{sT1}, v{vMLW}
        """)
    def p3_consts():
        e(f"""
        v_lshlrev_b32 v{pA}, 4, v{vLANE}
        v_lshlrev_b32 v{pOF}, 9, v{vN}
        v_lshl_add_u32 v{pOF}, v{vQ}, 4, v{pOF}
        v_lshlrev_b32 v{pML}, 3, v{vN}
        v_and_b32 v100, 1, v{vN}
        v_lshlrev_b32 v{pD1}, 14, v100
        v_bfe_u32 v100, v{vN}, 1, 1
        v_lshl_add_u32 v{pD1}, v100, 13, v{pD1}
        v_lshrrev_b32 v100, 2, v{vN}
        v_lshl_add_u32 v{pD1}, v100, 6, v{pD1}
        v_lshl_add_u32 v{pD1}, v{vQ}, 4, v{pD1}
        v_lshl_add_u32 v100, v{vQ}, 3, v100      ; 8q + r
        v_and_b32 v101, 3, v{vN}
        v_lshlrev_b32 v{tW64}, 6, v100
        v_lshl_add_u32 v{tW64}, v101, 3, v{tW64}
        s_mov_b32 s{sE3}, 0xaaaaaaaa
        s_mov_b32 s{sE3+1}, 0xaaaaaaaa
        """)
    def chain_consts():
        b, kh, q2, q1, t0, t1 = 4, 5, 6, 7, 8, 9
        e(f"""
        v_lshrrev_b32 v{t0}, 2, v{vN}
        v_lshl_add_u32 v{t0}, v{vQ}, 3, v{t0}    ; 8q + r
        v_and_b32 v{t1}, 3, v{vN}
        v_lshlrev_b32 v{tW32}, 5, v{t0}
        v_lshl_add_u32 v{tW32}, v{t1}, 3, v{tW32}
        v_lshlrev_b32 v{tGU}, 4, v{t0}
        v_and_b32 v{t0}, 1, v{t1}
        v_lshl_add_u32 v{tGU}, v{t0}, 3, v{tGU}
        v_lshrrev_b32 v{t0}, 1, v{t1}
        v_mul_u32_u24 v{t0}, 7168, v{t0}
        v_add_u32 v{tGU}, v{t0}, v{tGU}
        """)
    def chain_consts2():
        b, kh, q2, q1, t0, t1 = 4, 5, 6, 7, 8, 9
        e(f"""
        v_and_b32 v{b}, 7, v{vN}
        v_lshrrev_b32 v{kh}, 3, v{vN}
        v_lshrrev_b32 v{q2}, 1, v{vQ}
        v_and_b32 v{q1}, 1, v{vQ}
        v_and_b32 v{pXST}, 31, v{vLANE}
        v_lshlrev_b32 v{pXST}, 3, v{pXST}
        v_bfe_u32 v{pSST}, v{vLANE}, 2, 3
        v_lshlrev_b32 v{pSST}, 8, v{pSST}
        v_mul_u32_u24 v{pXLD}, 14, v{kh}
        v_add_u32 v{pXLD}, v{pXLD}, v{q2}
        v_lshlrev_b32 v{pXLD}, 8, v{pXLD}
        v_lshl_add_u32 v{pXLD}, v{b}, 5, v{pXLD}
        v_lshl_add_u32 v{pXLD}, v{q1}, 4, v{pXLD}
        v_lshlrev_b32 v{pSLD}, 8, v{b}
        v_lshrrev_b32 v{t0}, 3, v{vLANE}
        v_lshl_add_u32 v{pSLD}, v{t0}, 5, v{pSLD}
        v_lshlrev_b32 v{pHST}, 4, v{b}
        v_lshl_add_u32 v{pHST}, v{q1}, 3, v{pHST}
        v_lshl_add_u32 v{pHST}, v{q2}, 2, v{pHST}
        v_mul_u32_u24 v{pHLD}, 12, v{kh}
        v_add_u32 v{pHLD}, v{pHLD}, v{vQ}
        v_lshlrev_b32 v{pHLD}, 7, v{pHLD}
        v_lshl_add_u32 v{pHLD}, v{b}, 4, v{pHLD}
        v_lshlrev_b32 v{pA1}, 6, v{b}
        v_lshl_add_u32 v{pA1}, v{vQ}, 4, v{pA1}
        v_add_u32 v{pA1B}, {K8}, v{pA1}
        v_lshlrev_b32 v{pQST}, 10, v{b}
        v_lshl_add_u32 v{pQST}, v{vQ}, 3, v{pQST}
        """)
    def load_w(n, addr, ldsbase, istep, ustep):
        trfrags(vW, addr, [(ldsbase + i*istep, ldsbase + i*istep + ustep) for i in range(n)])
    def colsum():
        for k in range(4): e(f"v_mov_b32 v{vONE+k}, 0x3f803f80")
        e("s_waitcnt lgkmcnt(0)")
        for i in range(14):
            e(f"v_mfma_f32_16x16x32_bf16 {vr(vCS)}, {vr(vW+4*i)}, {vr(vONE)}, {vr(vCS) if i else '0'}")

    e(f"""
    s_cmp_ge_u32 s2, 256
    s_cbranch_scc1 L_exit
    s_load_dwordx16 s[4:19], s[0:1], 0
    s_load_dwordx8 s[20:27], s[0:1], 64
    v_readfirstlane_b32 s{sWAVE}, v0
    s_and_b32 s{sG}, s2, 7
    s_lshr_b32 s{sIDX}, s2, 3
    s_lshr_b32 s{sWAVE}, s{sWAVE}, 6
    s_mov_b32 s{sIT}, 0
    s_mov_b32 s{sSPIN}, 0
    v_and_b32 v{vN}, 15, v0
    v_and_b32 v{vLANE}, 63, v0
    v_lshrrev_b32 v{vQ}, 4, v{vLANE}
    s_cmp_ge_u32 s{sIDX}, 14
    s_cselect_b32 s{sH}, 1, 0
    s_mul_i32 s{sT1}, s{sH}, 14
    s_sub_u32 s{sCG}, s{sIDX}, s{sT1}
    s_lshr_b32 s{sPAR}, s{sG}, 2
    s_lshl_b32 s{sPAR}, s{sPAR}, 13
    s_and_b32 s{sG3}, s{sG}, 3
    s_mov_b32 s{sCL}, 0x3db8aa3b          ; log2(e)/16
    """)
    if stamps:
        for k in range(32): e(f"s_mov_b32 s{sSTAMP+k}, 0")
    stamp(0)
    e(f"""
    s_cmp_eq_u32 s{sWAVE}, 7
    s_cbranch_scc1 L_chain_pro
    """)
    kvaddr()
    e(f"""
    s_waitcnt lgkmcnt(0)
    s_cmp_ge_u32 s{sIDX}, 28
    s_cbranch_scc1 L_kvload
    s_cmp_eq_u32 s{sWAVE}, 0
    s_cbranch_scc0 L_not_w0
    ; wo tile: rows (2g+h)*256 + r, cols 32cg.. ; lane -> row lane/4, piece lane%4
    s_lshl_b32 s{sT1}, s{sG}, 1
    s_add_u32 s{sT1}, s{sT1}, s{sH}
    s_mul_i32 s{sT1}, s{sT1}, {256*896}
    s_lshl_b32 s{sT2}, s{sCG}, 6
    s_add_u32 s{sT1}, s{sT1}, s{sT2}
    v_lshrrev_b32 v100, 2, v{vLANE}
    v_mul_u32_u24 v100, 896, v100
    v_and_b32 v101, 3, v{vLANE}
    v_lshl_add_u32 v100, v101, 4, v100
    v_add_u32 v100, s{sT1}, v100
    """)
    dma(16, L_WO, 100, sWO, 16*896)
    e(f"""
    s_branch L_kvload
    L_not_w0:
    s_cmp_eq_u32 s{sWAVE}, 1
    s_cbranch_scc0 L_not_w1
    s_mul_i32 s{sT1}, s{sG}, 448
    s_lshl_b32 s{sT2}, s{sIDX}, 4
    s_add_u32 s{sT1}, s{sT1}, s{sT2}
    v_mul_u32_u24 v100, 3584, v{vLANE}
    v_add_u32 v100, s{sT1}, v100
    v_mov_b32 v101, v100
    """)
    dma(7, L_WG, 100, sWG, 64*3584)
    dma(7, L_WU, 101, sWU, 64*3584)
    e(f"""
    s_branch L_kvload
    L_not_w1:
    s_cmp_eq_u32 s{sWAVE}, 2
    s_cbranch_scc0 L_kvload
    s_mul_i32 s{sT1}, s{sG}, {224*896}
    s_lshl_b32 s{sT2}, s{sIDX}, 5
    s_add_u32 s{sT1}, s{sT1}, s{sT2}
    v_lshrrev_b32 v100, 1, v{vLANE}
    v_mul_u32_u24 v100, 896, v100
    v_and_b32 v101, 1, v{vLANE}
    v_lshl_add_u32 v100, v101, 4, v100
    v_add_u32 v100, s{sT1}, v100
    """)
    dma(7, L_WD, 100, sWD, 32*896)
    e("L_kvload:")
    kvloads()
    common_consts()
    p3_consts()
    e(f"""
    s_mov_b64 {sp(sIB)}, {sp(sWS)}
    s_lshl_b32 s{sT1}, s{sWAVE}, 9
    s_add_u32 s{sT1}, s{sT1}, {L_OC}
    v_lshlrev_b32 v{cOCR}, 3, v{vLANE}
    v_add_u32 v{cOCR}, s{sT1}, v{cOCR}
    s_lshr_b32 s{sT1}, s{sWAVE}, 1
    s_lshl_b32 s{sT1}, s{sT1}, 6
    s_add_u32 s{sT1}, s{sT1}, {L_ML}
    v_mov_b32 v{cMLR}, s{sT1}
    v_lshlrev_b32 v{cOST}, 2, v{vLANE}
    s_branch L_attn
    """)

    e("L_chain_pro:")
    e(f"""
    s_setprio 3
    v_and_b32 v100, 7, v{vN}
    v_lshrrev_b32 v101, 3, v{vN}
    v_mul_u32_u24 v102, 896, v100
    v_mul_u32_u24 v103, 448, v101
    v_add_u32 v102, v102, v103
    v_lshl_add_u32 v102, v{vQ}, 4, v102
    s_lshl_b32 s{sT1}, s{sG}, 10
    s_lshl_b32 s{sT2}, s{sIDX}, 5
    s_add_u32 s{sT1}, s{sT1}, s{sT2}
    v_lshrrev_b32 v106, 1, v{vLANE}
    v_lshlrev_b32 v106, 13, v106
    v_and_b32 v107, 1, v{vLANE}
    v_lshl_add_u32 v106, v107, 4, v106
    v_add_u32 v106, s{sT1}, v106
    ; residual slice: b=(l%32)/4, cq=l%4 : b*896 + j*32 + cq*8   (j clamped to 27)
    s_min_u32 s{sT1}, s{sIDX}, 27
    s_lshl_b32 s{sT1}, s{sT1}, 5
    v_bfe_u32 v103, v{vLANE}, 2, 3
    v_mul_u32_u24 v104, 896, v103
    v_and_b32 v105, 3, v{vLANE}
    v_lshl_add_u32 v104, v105, 3, v104
    v_add_u32 v104, s{sT1}, v104
    s_waitcnt lgkmcnt(0)
    """)
    for i in range(7): e(f"global_load_dwordx4 {vr(vD+4*i)}, v102, {sp(sX)} offset:{64*i}")
    e(f"global_load_dwordx2 v[60:61], v104, {sp(sX)}")
    dma(14, L_WQ, 106, sWQ, 32*8192)
    p3_consts()
    e(f"""
    s_mul_i32 s{sT1}, s2, 5120
    s_add_u32 s{sT1}, s{sT1}, 2048
    v_add_u32 v108, s{sT1}, v{pA}
    v_add_u32 v109, {ITSTRIDE}, v108
    v_mov_b32 v112, -1
    v_mov_b32 v113, -1
    v_mov_b32 v114, -1
    v_mov_b32 v115, -1
    """)
    for r in (108, 109):
        for i in range(5): e(f"global_store_dwordx4 v{r}, v[112:115], {sp(sWS)} offset:{1024*i-2048} sc1")
    chain_consts(); chain_consts2()
    e(f"""
    s_mov_b32 s{sE0}, 0x00ff00ff
    s_mov_b32 s{sE0+1}, 0x00ff00ff          ; lanes n<8
    s_mov_b32 s{sE1}, 0x11111111
    s_mov_b32 s{sE1+1}, 0                   ; l<32, l%4==0
    s_mov_b32 s{sE2}, -1
    s_mov_b32 s{sE2+1}, 0x00ffffff          ; lanes < 56
    s_getreg_b32 s{sXCC}, hwreg(HW_REG_XCC_ID, 0, 4)
    s_and_b32 s{sXCC}, s{sXCC}, 7
    s_lshr_b32 s{sNEAR}, s{sXCC}, 2
    s_lshl_b32 s{sNEAR}, s{sNEAR}, 13
    s_mov_b32 s{sFAST}, 0
    s_mov_b32 s{sINV}, 0x3b124925           ; 1/448
    s_mov_b32 s{sEPS}, 0x3727c5ac           ; 1e-5
    s_mov_b32 s{sNL2E}, 0xbfb8aa3b          ; -log2(e)
    s_mov_b64 {sp(sIB)}, {sp(sWS)}
    s_lshl_b32 s{sT1}, s{sG3}, 14
    s_add_u32 s{sT1}, s{sT1}, s{sPAR}
    """)
    base(sQB, sWS, f"s{sT1}", W_Q0)
    vS1, vS2 = vST, vST+1
    e(f"""
    v_mov_b32 v{vONE}, 0x3f803f80
    v_mov_b32 v{vS1}, 0
    v_mov_b32 v{vS2}, 0
    s_waitcnt vmcnt(24)
    """)
    for i in range(28):
        e(f"v_dot2c_f32_bf16 v{vS1}, v{vD+i}, v{vONE}\nv_dot2c_f32_bf16 v{vS2}, v{vD+i}, v{vD+i}")
    e(f"""
    v_lshlrev_b32 v{vRES}, 16, v60
    v_and_b32 v{vRES+1}, 0xffff0000, v60
    v_lshlrev_b32 v{vRES+2}, 16, v61
    v_and_b32 v{vRES+3}, 0xffff0000, v61
    s_waitcnt vmcnt(10)
    """)
    stamp(1)
    load_w(14, tW32, L_WQ, 1024, 128)
    colsum()
    e("s_branch L_p1_core")

    e("L_attn:")
    e("s_barrier")
    stamp(2)
    vQF = vD; vS = 64; vAF = 72; vAC = 80; vM = 88; vL = 89; vX0 = 90; vX1 = 91
    for i in range(8): e(f"ds_read_b128 {vr(vQF+4*i)}, v{vQSR} offset:{64*i}")
    e(f"v_mov_b32 v{vX0}, {L_FL}\nds_read_b32 v{vX1}, v{vX0}")
    for t in range(2):
        e(f"s_waitcnt vmcnt({24-8*t})")
        for i in range(8):
            if t == 0: e(f"s_waitcnt lgkmcnt({8-i})")
            e(f"v_mfma_f32_16x16x32_bf16 {vr(vS+4*t)}, {vr(vKF+32*t+4*i)}, {vr(vQF+4*i)}, {vr(vS+4*t) if i else '0'}")
    e(f"s_waitcnt lgkmcnt(0)\nv_readfirstlane_b32 s{sFAST}, v{vX1}")
    e(f"""
    v_max3_f32 v{vM}, v{vS}, v{vS+1}, v{vS+2}
    v_max3_f32 v{vM}, v{vS+3}, v{vS+4}, v{vM}
    v_max3_f32 v{vM}, v{vS+5}, v{vS+6}, v{vM}
    v_max_f32 v{vM}, v{vS+7}, v{vM}
    v_mov_b32 v{vX0}, v{vM}
    v_permlane32_swap_b32 v{vM}, v{vX0}
    v_max_f32 v{vM}, v{vM}, v{vX0}
    v_mov_b32 v{vX0}, v{vM}
    v_permlane16_swap_b32 v{vM}, v{vX0}
    v_max_f32 v{vM}, v{vM}, v{vX0}
    v_mul_f32 v{vM}, s{sCL}, v{vM}
    """)
    for k in range(8): e(f"v_fma_f32 v{vS+k}, v{vS+k}, s{sCL}, -v{vM}")
    for k in range(8): e(f"v_exp_f32 v{vS+k}, v{vS+k}")
    e(f"v_add_f32 v{vL}, v{vS}, v{vS+1}")
    for k in range(2, 8): e(f"v_add_f32 v{vL}, v{vL}, v{vS+k}")
    for k in range(8): e(f"v_cvt_pk_bf16_f32 v{vS+k}, v{vS+k}, v{vS+k}")
    for k in range(8):
        af = vAF + 4*(k % 2)
        for r in range(4): e(f"v_and_b32 v{af+r}, v{vS+k}, v{vMASK+r}")
        e(f"s_waitcnt vmcnt({14-2*k})")
        for c in range(2):
            e(f"v_mfma_f32_16x16x32_bf16 {vr(vAC+4*c)}, {vr(af)}, {vr(vVF+8*k+4*c)}, {vr(vAC+4*c) if k else '0'}")
    e(f"""
    v_mov_b32 v{vX0}, v{vL}
    v_permlane32_swap_b32 v{vL}, v{vX0}
    v_add_f32 v{vL}, v{vL}, v{vX0}
    v_mov_b32 v{vX0}, v{vL}
    v_permlane16_swap_b32 v{vL}, v{vX0}
    v_add_f32 v{vL}, v{vL}, v{vX0}
    s_mov_b64 exec, 0x101
    ds_write_b64 v{vMLW}, v[{vM}:{vL}]
    s_mov_b64 exec, -1
    ds_write_b128 v{vOCW}, {vr(vAC)}
    ds_write_b128 v{vOCW}, {vr(vAC+4)} offset:512
    s_mul_i32 s{sT1}, s{sG3}, {3*K16}
    s_add_u32 s{sT1}, s{sT1}, s{sPAR}
    """)
    base(sMB, sIB, f"s{sT1}", W_M)
    stamp(3)
    e(f"""
    s_waitcnt lgkmcnt(0)
    s_barrier
    s_cmp_ge_u32 s{sWAVE}, 6
    s_cbranch_scc1 L_p3
    s_cmp_ge_u32 s{sWAVE}, 4
    s_cbranch_scc1 L_next
    """)
    for k in range(4): e(f"ds_read_b128 {vr(vD+4*k)}, v{cMLR} offset:{16*k}")
    for w in range(8): e(f"ds_read_b64 {vr(vD+16+2*w,2)}, v{cOCR} offset:{2048*w}")
    e(f"""
    s_lshr_b32 s{sT1}, s{sWAVE}, 1
    s_lshl_b32 s{sT2}, s{sG3}, 1
    s_add_u32 s{sT2}, s{sT2}, s{sT1}
    s_lshl_b32 s{sT2}, s{sT2}, 1
    s_lshr_b32 s{sT3}, s{sIDX}, 4
    s_add_u32 s{sT2}, s{sT2}, s{sT3}
    s_lshl_b32 s{sT2}, s{sT2}, 14
    s_add_u32 s{sT2}, s{sT2}, s{sPAR}
    s_and_b32 s{sT3}, s{sIDX}, 15
    s_lshl_b32 s{sT3}, s{sT3}, 9
    s_add_u32 s{sT2}, s{sT2}, s{sT3}
    s_and_b32 s{sT3}, s{sWAVE}, 1
    s_lshl_b32 s{sT3}, s{sT3}, 8
    s_add_u32 s{sT2}, s{sT2}, s{sT3}
    """)
    base(sA, sIB, f"s{sT2}", W_O)
    e(f"""
    s_lshl_b32 s{sT1}, s{sT1}, 8
    s_lshl_b32 s{sT3}, s{sIDX}, 3
    s_add_u32 s{sT1}, s{sT1}, s{sT3}
    """)
    base(sB, sMB, f"s{sT1}", 7168)
    mm = [vD + 2*w for w in range(8)]; ll = [vD + 2*w + 1 for w in range(8)]
    e(f"""
    s_waitcnt lgkmcnt(8)
    v_max3_f32 v{vM}, v{mm[0]}, v{mm[1]}, v{mm[2]}
    v_max3_f32 v{vM}, v{mm[3]}, v{mm[4]}, v{vM}
    v_max3_f32 v{vM}, v{mm[5]}, v{mm[6]}, v{vM}
    v_max_f32 v{vM}, v{mm[7]}, v{vM}
    """)
    for w in range(8): e(f"v_sub_f32 v{mm[w]}, v{mm[w]}, v{vM}")
    for w in range(8): e(f"v_exp_f32 v{mm[w]}, v{mm[w]}")
    e(f"v_mul_f32 v{vL}, v{mm[0]}, v{ll[0]}")
    for w in range(1, 8): e(f"v_fmac_f32 v{vL}, v{mm[w]}, v{ll[w]}")
    e(f"v_rcp_f32 v{vX0}, v{vL}")
    e("s_waitcnt lgkmcnt(0)")
    o0, o1 = 92, 93
    e(f"v_mul_f32 v{o0}, v{mm[0]}, v{vD+16}\nv_mul_f32 v{o1}, v{mm[0]}, v{vD+17}")
    for w in range(1, 8):
        e(f"v_fmac_f32 v{o0}, v{mm[w]}, v{vD+16+2*w}\nv_fmac_f32 v{o1}, v{mm[w]}, v{vD+17+2*w}")
    e(f"""
    v_mul_f32 v{o0}, v{o0}, v{vX0}
    v_mul_f32 v{o1}, v{o1}, v{vX0}
    v_cvt_pk_bf16_f32 v{o0}, v{o0}, v{o1}
    v_min_u32 v{o0}, -2, v{o0}
    v_min_u32 v{vM}, -2, v{vM}
    v_min_u32 v{vL}, -2, v{vL}
    v_mov_b32 v{vX1}, 0
    """)
    st_intra([f"global_store_dword v{cOST}, v{o0}, {sp(sA)}",
              "s_mov_b64 exec, 1",
              f"global_store_dwordx2 v{vX1}, v[{vM}:{vL}], {sp(sB)}",
              "s_mov_b64 exec, -1"])
    stamp(4)
    e("L_next:")
    dump_stamps()
    e(f"""
    s_cmp_eq_u32 s{sIT}, 1
    s_cbranch_scc1 L_exit
    s_mov_b32 s{sIT}, 1
    """)
    base(sIB, sWS, ITSTRIDE)
    e("s_branch L_attn")

    e("L_p3:")
    e(f"""
    s_cmp_lt_u32 s{sIDX}, 28
    s_cbranch_scc1 L_p3_go
    s_cmp_eq_u32 s{sWAVE}, 6
    s_cbranch_scc1 L_next
    s_cmp_eq_u32 s{sIT}, 1
    s_cbranch_scc1 L_exit
    """)
    load_w(14, tW32, L_WQ, 1024, 128)
    colsum()
    e("s_branch L_p1")
    e("L_p3_go:")
    trfrags(vW, tW64, [(L_WO + i*2048 + ct*32, L_WO + i*2048 + 256 + ct*32) for ct in range(2) for i in range(8)])
    e(f"""
    s_sub_u32 s{sT3}, s{sWAVE}, 6            ; rt
    s_lshl_b32 s{sT2}, s{sG3}, 1
    s_add_u32 s{sT2}, s{sT2}, s{sH}
    s_lshl_b32 s{sT2}, s{sT2}, 1
    s_add_u32 s{sT2}, s{sT2}, s{sT3}
    s_lshl_b32 s{sT2}, s{sT2}, 14
    s_add_u32 s{sT2}, s{sT2}, s{sPAR}
    """)
    base(sA, sIB, f"s{sT2}", W_O)
    e(f"""
    s_lshl_b32 s{sT1}, s{sH}, 8
    s_lshl_b32 s{sT2}, s{sT3}, 7
    s_add_u32 s{sT1}, s{sT1}, s{sT2}
    """)
    base(sB, sMB, f"s{sT1}", 7168)
    e(f"""
    s_lshl_b32 s{sT1}, s{sCG}, 15
    s_lshl_b32 s{sT2}, s{sG}, 1
    s_add_u32 s{sT2}, s{sT2}, s{sH}
    s_lshl_b32 s{sT2}, s{sT2}, 9
    s_add_u32 s{sT1}, s{sT1}, s{sT2}
    s_lshl_b32 s{sT2}, s{sT3}, 8
    s_add_u32 s{sT1}, s{sT1}, s{sT2}
    """)
    base(sC, sIB, f"s{sT1}", W_D1)
    e(f"""
    s_lshl_b32 s{sT1}, s{sIDX}, 14
    s_add_u32 s{sT1}, s{sT1}, s{sNEAR}
    """)
    base(sD, sIB, f"s{sT1}", W_D1 + 4096)
    e("s_waitcnt lgkmcnt(0)")
    stamp(4)
    pac = 16; pml = 24; ptm = 26
    poll([f"global_load_dwordx2 v[{pml}:{pml+1}], v{pML}, {sp(sB)} sc1"] +
         [f"global_load_dwordx4 {vr(vD+4*i)}, v{pOF}, {sp(sA)} offset:{64*i} sc1" for i in range(8)],
         [pml, pml+1] + list(range(vD, vD+32)))
    stamp(5)
    for i in range(8):
        for ct in range(2):
            e(f"v_mfma_f32_16x16x32_bf16 {vr(pac+4*ct)}, {vr(vW+32*ct+4*i)}, {vr(vD+4*i)}, {vr(pac+4*ct) if i else '0'}")
    dq1 = "quad_perm:[1,0,3,2] row_mask:0xf bank_mask:0xf"; dq2 = "quad_perm:[2,3,0,1] row_mask:0xf bank_mask:0xf"
    e(f"""
    v_max_f32_dpp v{ptm}, v{pml}, v{pml} {dq1}
    v_max_f32_dpp v{ptm}, v{ptm}, v{ptm} {dq2}
    v_sub_f32 v{pml}, v{pml}, v{ptm}
    v_exp_f32 v{pml}, v{pml}
    v_mul_f32 v{pml}, v{pml}, v{pml+1}
    v_add_f32_dpp v{ptm}, v{pml}, v{pml} {dq1}
    v_add_f32_dpp v{ptm}, v{ptm}, v{ptm} {dq2}
    v_rcp_f32 v{ptm}, v{ptm}
    v_mul_f32 v{pml}, v{pml}, v{ptm}
    """)
    for k in range(8): e(f"v_mul_f32 v{pac+k}, v{pac+k}, v{pml}")
    for k in range(8): e(f"v_add_f32_dpp v{pac+k}, v{pac+k}, v{pac+k} {dq1}")
    for k in range(8): e(f"v_add_f32_dpp v{pac+k}, v{pac+k}, v{pac+k} {dq2}")
    for k in range(4): e(f"v_cndmask_b32 v{pac+k}, v{pac+k}, v{pac+4+k}, {sp(sE3)}")
    for k in range(4): e(f"v_min_u32 v{pac+k}, -2, v{pac+k}")
    e(f"global_store_dwordx4 v{pD1}, {vr(pac)}, {sp(sC)} sc1")
    stamp(6)
    e(f"""
    s_cmp_eq_u32 s{sWAVE}, 6
    s_cbranch_scc1 L_next
    """)

    def reduce_phase(nl, sbase, off0, mid, final_ok):
        poll([f"global_load_dwordx4 {vr(vD+4*i)}, v{pA}, {sp(sbase)} offset:{1024*i+off0} sc1" for i in range(nl)],
             range(vD, vD+4*nl), mid=mid)
        n = nl
        while n > 1:
            for i in range(n//2):
                for k in (0, 2):
                    e(f"v_pk_add_f32 {vr(vD+4*i+k,2)}, {vr(vD+4*i+k,2)}, {vr(vD+4*(i+n//2)+k,2)}")
            n //= 2
        for k in range(4): e(f"v_mov_b32 v{vD+4+k}, v{vD+k}")
        for k in range(4): e(f"v_permlane32_swap_b32 v{vD+k}, v{vD+4+k}")
        for k in range(4): e(f"v_add_f32 v{vD+k}, v{vD+k}, v{vD+4+k}")
        for k in range(4): e(f"v_add_f32 v{vD+k}, v{vD+k}, v{vRES+k}")
        e(f"v_cvt_pk_bf16_f32 v{vD+4}, v{vD}, v{vD+1}\nv_cvt_pk_bf16_f32 v{vD+5}, v{vD+2}, v{vD+3}")
    def publish_x():
        e(f"v_min_u32 v{vD+4}, -2, v{vD+4}\nv_min_u32 v{vD+5}, -2, v{vD+5}")
        st_intra(["s_mov_b64 exec, 0xffffffff",
                  f"global_store_dwordx2 v{pXST}, v[{vD+4}:{vD+5}], {sp(sA)}",
                  "s_mov_b64 exec, -1"])
        e(f"""
        v_lshlrev_b32 v{vRES}, 16, v{vD+4}
        v_and_b32 v{vRES+1}, 0xffff0000, v{vD+4}
        v_lshlrev_b32 v{vRES+2}, 16, v{vD+5}
        v_and_b32 v{vRES+3}, 0xffff0000, v{vD+5}
        v_add_f32 v{vD}, v{vRES}, v{vRES+1}
        v_mul_f32 v{vD+1}, v{vRES}, v{vRES}
        v_add_f32 v{vD+2}, v{vRES+2}, v{vRES+3}
        v_fmac_f32 v{vD+1}, v{vRES+1}, v{vRES+1}
        v_add_f32 v{vD}, v{vD}, v{vD+2}
        v_fmac_f32 v{vD+1}, v{vRES+2}, v{vRES+2}
        v_fmac_f32 v{vD+1}, v{vRES+3}, v{vRES+3}
        v_add_f32_dpp v{vD}, v{vD}, v{vD} {dq1}
        v_add_f32_dpp v{vD+1}, v{vD+1}, v{vD+1} {dq1}
        v_add_f32_dpp v{vD}, v{vD}, v{vD} {dq2}
        v_add_f32_dpp v{vD+1}, v{vD+1}, v{vD+1} {dq2}
        v_min_u32 v{vD}, -2, v{vD}
        v_min_u32 v{vD+1}, -2, v{vD+1}
        """)
        st_intra([f"s_mov_b64 exec, {sp(sE1)}",
                  f"global_store_dwordx2 v{pSST}, v[{vD}:{vD+1}], {sp(sB)}",
                  "s_mov_b64 exec, -1"])
    def gather_x(sxb, ssb):
        for k in range(8): e(f"v_mov_b32 v{vST+k}, 0")
        poll([f"global_load_dwordx4 {vr(vD+4*i)}, v{pXLD}, {sp(sxb)} offset:{512*i} sc1" for i in range(7)] +
             [f"s_mov_b64 exec, {sp(sE2)}",
              f"global_load_dwordx4 {vr(vST)}, v{pSLD}, {sp(ssb)} sc1",
              f"global_load_dwordx4 {vr(vST+4)}, v{pSLD}, {sp(ssb)} offset:16 sc1",
              "s_mov_b64 exec, -1"],
             list(range(vD, vD+28)) + list(range(vST, vST+8)))
        e(f"""
        v_pk_add_f32 {vr(vST,2)}, {vr(vST,2)}, {vr(vST+2,2)}
        v_pk_add_f32 {vr(vST+4,2)}, {vr(vST+4,2)}, {vr(vST+6,2)}
        v_pk_add_f32 {vr(vST,2)}, {vr(vST,2)}, {vr(vST+4,2)}
        """)
    ac0, ac1 = 60, 120
    ror8 = "row_ror:8 row_mask:0xf bank_mask:0xf"
    def ln_gemm():
        for i in range(7):
            e(f"v_mfma_f32_16x16x32_bf16 {vr(ac0)}, {vr(vW+4*i)}, {vr(vD+4*i)}, {vr(ac0) if i else '0'}")
            e(f"v_mfma_f32_16x16x32_bf16 {vr(ac1)}, {vr(vW+28+4*i)}, {vr(vD+4*i)}, {vr(ac1) if i else '0'}")
        s1, s2, t = vST, vST+1, vST+2
        e(f"""
        v_permlane32_swap_b32 v{s1}, v{s2}
        v_add_f32 v{s1}, v{s1}, v{s2}
        v_mov_b32 v{s2}, v{s1}
        v_permlane16_swap_b32 v{s1}, v{s2}
        v_add_f32 v{s1}, v{s1}, v{s2}
        v_add_f32_dpp v{s1}, v{s1}, v{s1} {ror8}
        v_mul_f32 v{s1}, s{sINV}, v{s1}
        v_mov_b32 v{s2}, v{s1}
        v_permlane32_swap_b32 v{s1}, v{s2}
        ; s1 = mean, s2 = E[x^2]
        v_fma_f32 v{s2}, -v{s1}, v{s1}, v{s2}
        v_max_f32 v{s2}, 0, v{s2}
        v_add_f32 v{s2}, s{sEPS}, v{s2}
        v_rsq_f32 v{s2}, v{s2}
        """)
        for k in range(4): e(f"v_add_f32_dpp v{ac0+k}, v{ac1+k}, v{ac0+k} {ror8}")
        for k in range(4): e(f"v_fma_f32 v{ac0+k}, -v{s1}, v{vCS+k}, v{ac0+k}")
        for k in range(4): e(f"v_mul_f32 v{ac0+k}, v{ac0+k}, v{s2}")

    def r1_mid():
        chain_consts()
        load_w(14, tGU, L_WG, 512, 64)
        chain_consts2()
        e(f"s_lshl_b32 s{sT1}, s{sIDX}, 8")
        base(sA, sMB, f"s{sT1}")
        e(f"s_lshl_b32 s{sT1}, s{sIDX}, 3")
        base(sB, sMB, f"s{sT1}", 2*K16)
        base(sC, sMB, 2*K16)
        colsum()
    e("s_waitcnt vmcnt(0)")
    reduce_phase(8, sD, -4096, r1_mid, False)
    stamp(7)
    publish_x()
    gather_x(sMB, sC)
    stamp(8)
    e(f"s_lshl_b32 s{sT1}, s{sIDX}, 7")
    base(sA, sMB, f"s{sT1}", 2*K16 + 4096)
    base(sB, sMB, 2*K16 + 4096)
    ln_gemm()
    e(f"""
    v_permlane32_swap_b32 v{ac0}, v{ac0+2}
    v_permlane32_swap_b32 v{ac0+1}, v{ac0+3}
    v_mul_f32 v{ac0}, s{sNL2E}, v{ac0}
    v_mul_f32 v{ac0+1}, s{sNL2E}, v{ac0+1}
    v_exp_f32 v{ac0}, v{ac0}
    v_exp_f32 v{ac0+1}, v{ac0+1}
    v_add_f32 v{ac0}, 1.0, v{ac0}
    v_add_f32 v{ac0+1}, 1.0, v{ac0+1}
    v_rcp_f32 v{ac0}, v{ac0}
    v_rcp_f32 v{ac0+1}, v{ac0+1}
    v_mul_f32 v{ac0}, v{ac0}, v{ac0+2}
    v_mul_f32 v{ac0+1}, v{ac0+1}, v{ac0+3}
    v_cvt_pk_bf16_f32 v{ac0}, v{ac0}, v{ac0+1}
    v_min_u32 v{ac0}, -2, v{ac0}
    """)
    st_intra([f"s_mov_b64 exec, {sp(sE0)}",
              f"global_store_dword v{pHST}, v{ac0}, {sp(sA)}",
              "s_mov_b64 exec, -1"])
    stamp(9)
    def p5_mid():
        load_w(7, tW32, L_WD, 1024, 128)
        e(f"""
        s_lshr_b32 s{sT1}, s{sIDX}, 1
        s_lshl_b32 s{sT1}, s{sT1}, 14
        s_and_b32 s{sT2}, s{sIDX}, 1
        s_lshl_b32 s{sT2}, s{sT2}, 12
        s_add_u32 s{sT1}, s{sT1}, s{sT2}
        s_lshl_b32 s{sT2}, s{sG}, 9
        s_add_u32 s{sT2}, s{sT2}, s{sT1}
        s_add_u32 s{sT1}, s{sT1}, s{sNEAR}
        """)
        base(sC, sIB, f"s{sT2}", W_A1)
        base(sD, sIB, f"s{sT1}", W_A1)
        e("s_waitcnt lgkmcnt(0)")
    poll([f"global_load_dwordx4 {vr(vD+4*i)}, v{pHLD}, {sp(sB)} offset:{512*i} sc1" for i in range(4)],
         range(vD, vD+16), mid=p5_mid)
    stamp(10)
    for i in range(4):
        e(f"v_mfma_f32_16x16x32_bf16 {vr(ac0)}, {vr(vW+4*i)}, {vr(vD+4*i)}, {vr(ac0) if i else '0'}")
        if i: e(f"v_mfma_f32_16x16x32_bf16 {vr(ac1)}, {vr(vW+12+4*i)}, {vr(vD+4*i)}, {vr(ac1) if i > 1 else '0'}")
    for k in range(4): e(f"v_add_f32_dpp v{ac0+k}, v{ac1+k}, v{ac0+k} {ror8}")
    for k in range(4): e(f"v_min_u32 v{ac0+k}, -2, v{ac0+k}")
    e(f"""
    s_mov_b64 exec, {sp(sE0)}
    global_store_dwordx4 v{pA1}, {vr(ac0)}, {sp(sC)} sc1
    global_store_dwordx4 v{pA1B}, {vr(ac0)}, {sp(sC)} sc1
    s_mov_b64 exec, -1
    """)
    stamp(11)
    def r2_mid():
        load_w(14, tW32, L_WQ, 1024, 128)
        e(f"s_lshl_b32 s{sT1}, s{sIDX}, 8")
        base(sA, sMB, f"s{sT1}", K16)
        e(f"s_lshl_b32 s{sT1}, s{sIDX}, 3")
        base(sB, sMB, f"s{sT1}", 2*K16 + 2048)
        colsum()
    e("s_waitcnt vmcnt(0)")
    reduce_phase(4, sD, 0, r2_mid, True)
    stamp(12)
    e(f"""
    s_cmp_eq_u32 s{sIT}, 1
    s_cbranch_scc1 L_final
    """)
    publish_x()
    e("L_p1:")
    base(sA, sMB, K16)
    base(sB, sMB, 2*K16 + 2048)
    e(f"""
    s_lshl_b32 s{sT1}, s{sG3}, 14
    s_add_u32 s{sT1}, s{sT1}, s{sPAR}
    """)
    base(sQB, sWS, f"s{sT1}", ITSTRIDE + W_Q)
    gather_x(sA, sB)
    stamp(13)
    e(f"s_mov_b32 s{sT0}, 1")
    e("s_branch L_p1_core2")
    e("L_p1_core:")
    e(f"s_mov_b32 s{sT0}, 0")
    e("L_p1_core2:")
    e(f"s_lshl_b32 s{sT1}, s{sIDX}, 5")
    base(sA, sQB, f"s{sT1}")
    e(f"s_lshr_b32 s{sT1}, s{sIDX}, 2\ns_lshl_b32 s{sT1}, s{sT1}, 10")
    base(sB, sQB, f"s{sT1}")
    ln_gemm()
    e(f"""
    v_cvt_pk_bf16_f32 v{ac0}, v{ac0}, v{ac0+1}
    v_cvt_pk_bf16_f32 v{ac0+1}, v{ac0+2}, v{ac0+3}
    v_min_u32 v{ac0}, -2, v{ac0}
    v_min_u32 v{ac0+1}, -2, v{ac0+1}
    """)
    st_intra([f"s_mov_b64 exec, {sp(sE0)}",
              f"global_store_dwordx2 v{pQST}, v[{ac0}:{ac0+1}], {sp(sA)}",
              "s_mov_b64 exec, -1"])
    stamp(14)
    e(f"""
    s_cmp_eq_u32 s{sT0}, 0
    s_cbranch_scc1 L_first_q
    """)
    def b_mid():
        dump_stamps()
        common_consts()
        e(f"s_mov_b32 s{sIT}, 1")
        base(sIB, sWS, ITSTRIDE)
        e(f"v_add_u32 v100, {L_QS}, v{pA}")
    poll([f"global_load_dwordx4 {vr(vD)}, v{pA}, {sp(sB)} sc1"], range(vD, vD+4), mid=b_mid)
    e(f"""
    ds_write_b128 v100, {vr(vD)}
    s_waitcnt lgkmcnt(0)
    s_branch L_attn
    """)
    e("L_first_q:")
    common_consts()
    kvaddr()
    e(f"""
    s_mul_i32 s{sT1}, s{sXCC}, 6
    s_mov_b64 {sp(sC)}, 1
    s_lshl_b64 {sp(sC)}, {sp(sC)}, s{sT1}
    s_lshl_b64 {sp(sD)}, {sp(sC)}, 5
    s_add_u32 s{sC+1}, s{sC+1}, 0x10000
    s_add_u32 s{sD+1}, s{sD+1}, 0x200000
    v_mov_b32 v102, s{sC}
    v_mov_b32 v103, s{sC+1}
    s_lshl_b32 s{sT1}, s{sG}, 5
    v_mov_b32 v104, s{sT1}
    v_and_b32 v105, 7, v{vLANE}
    v_lshlrev_b32 v105, 5, v105
    s_waitcnt vmcnt(0)
    s_mov_b64 exec, 1
    global_atomic_add_x2 v104, v[102:103], {sp(sDBG)}
    s_mov_b64 exec, -1
    L_bar:
    global_load_dwordx2 v[106:107], v105, {sp(sDBG)} sc1
    s_add_u32 s{sSPIN}, s{sSPIN}, 1
    s_cmp_gt_u32 s{sSPIN}, {SPIN_LIMIT}
    s_cbranch_scc1 L_exit
    s_waitcnt vmcnt(0)
    v_lshrrev_b32 v108, 16, v107
    v_cmp_ne_u32 vcc, 32, v108
    s_cbranch_vccnz L_bar
    global_load_dwordx4 {vr(vD)}, v{pA}, {sp(sB)} sc1
    """)
    stamp(15)
    kvloads()
    e(f"""
    v_readlane_b32 s{sT1}, v106, s{sG}
    v_readlane_b32 s{sT2}, v107, s{sG}
    s_cmp_eq_u32 s{sT1}, s{sD}
    s_cselect_b32 s{sT1}, 1, 0
    s_cmp_eq_u32 s{sT2}, s{sD+1}
    s_cselect_b32 s{sT1}, s{sT1}, 0
    v_mov_b32 v102, s{sT1}
    v_mov_b32 v103, {L_FL}
    ds_write_b32 v103, v102
    v_add_u32 v100, {L_QS}, v{pA}
    s_waitcnt vmcnt(32)
    ds_write_b128 v100, {vr(vD)}
    s_waitcnt lgkmcnt(0)
    s_branch L_attn
    """)
    e("L_final:")
    e(f"""
    s_lshl_b32 s{sT1}, s{sG}, 2
    s_lshl_b32 s{sT2}, 15, s{sT1}
    s_mul_i32 s{sT1}, s{sG}, {896-32}
    s_lshl_b32 s{sT3}, s{sIDX}, 5
    s_add_u32 s{sT1}, s{sT1}, s{sT3}
    """)
    base(sA, sOUT, f"s{sT1}")
    e(f"""
    s_mov_b32 exec_lo, s{sT2}
    s_mov_b32 exec_hi, 0
    global_store_dwordx2 v{pXST}, v[{vD+4}:{vD+5}], {sp(sA)}
    s_mov_b64 exec, -1
    """)
    stamp(13)
    dump_stamps()
    e("L_exit:")
    e("s_endpgm")
    for slow, instrs, back in ool:
        e(f"{slow}:")
        for i in instrs: e(i)
        e(f"s_branch {back}")

    head = []
    for line in open(REF):
        if line.startswith(';') and '@launch' not in line: head.append(line.rstrip())
        elif not line.startswith(';'): break
    src = "\n".join(head) + f"""
; @launch grid=(256,1,1) block=(512,1,1) lds={LDS_BYTES}
.amdgcn_target "amdgcn-amd-amdhsa--gfx950"
.text
.globl {KNAME}
.p2align 8
.type {KNAME},@function
{KNAME}:
""" + a.text() + f""".section .rodata,"a"
.p2align 6
.amdhsa_kernel {KNAME}
  .amdhsa_next_free_vgpr 256
  .amdhsa_next_free_sgpr 102
  .amdhsa_accum_offset 256
  .amdhsa_group_segment_fixed_size 0
  .amdhsa_kernarg_size 96
  .amdhsa_user_sgpr_count 2
  .amdhsa_user_sgpr_kernarg_segment_ptr 1
  .amdhsa_system_sgpr_workgroup_id_x 1
.end_amdhsa_kernel
"""
    return src

if __name__ == "__main__":
    out = sys.argv[1] if len(sys.argv) > 1 else "interleave_layers__sliding_block_cached__glu_gated_glu__decode.s"
    open(out, "w").write(gen(stamps=("stamps" in sys.argv)))
```

```python
import sys
sys.path.insert(0, "dev")
from asmlib import Asm

KNAME = "interleave_layers__sliding_block_cached__glu_gated_glu__decode_kernel"
REF = "interleave_layers__sliding_block_cached__glu_gated_glu__decode.s.ref"

K16 = 16384; K8 = 8192
W_Q = 0x00000; W_O = 0x10000; W_M = 0x50000; W_D1 = 0x80000; W_A1 = 0xF0000; W_Q0 = 0x140000
ITSTRIDE = 0x400000
W_STAMP = 0x800000
W_EPOCH = 0x180000
W_FLAG = 0x160000
L_WQ = 0; L_WO = 14336; L_WG = 30720; L_WU = 37888; L_WD = 45056; L_QS = 52224; L_OC = 53248; L_ML = 69632; L_FL = 69760; L_KV0 = 70656
LDS_BYTES = 70656 + 32768
sX, sK, sV, sWQ, sWO, sWG, sWU, sWD, sOUT, sDBG, sWS = 4, 6, 8, 10, 12, 16, 18, 20, 22, 24, 26
sG, sIDX, sWAVE, sFAST, sIT, sSPIN, sXCC, sPAR, sNEAR = 28, 29, 30, 31, 32, 33, 34, 35, 36
sH, sCG, sG3 = 37, 38, 39
sIB = 40
sA, sB, sC = 42, 44, 46
sT0, sT1, sT2, sT3 = 48, 49, 50, 51
sMB = 52
sE0 = 54; sE1 = 56; sE2 = 58; sE3 = 14
sCL = 60; sINV = 61
sD = 62
sQB = 64
sEPS = 66; sNL2E = 67
sTAG = 3; sGX = 100
sSTAMP = 68
def sp(r): return f"s[{r}:{r+1}]"
def vr(r, n=4): return f"v[{r}:{r+n-1}]"
vLANE, vN, vQ, vT = 0, 1, 2, 3
vMASK = 4
vQSR, vOCW, vMLW = 8, 9, 10
vST = 4
pA, pOF, pML, pD1 = 12, 13, 14, 15
pXST, pSST, pXLD, pSLD, pHST, pHLD, pA1, pA1B, pQST, tW32, tGU = range(16, 27)
tW64 = 27
cOCR, cMLR, cOST = 16, 17, 18
vRES = 28
vD = 32
vW = 64
vONE = 120; vCS = 124
vKF = 128; vVF = 192
SPIN_LIMIT = 100000
DBG_SH = 4; DBG_OFF = 128

def gen(stamps=False, nt="nt", clr="sc1", q1wait=False, no_wdma=False, no_clear=False, wnt=None, landstamp=False, wo_early=False, wd_end=False, touch=False, lnt=None, pnt=None, warm=True, mid_gather=0, thr=1):
    if pnt is None: pnt = nt
    if lnt is None: lnt = nt
    if wnt is None: wnt = nt
    a = Asm(); e = a.e
    ool = []
    throttle = [None]
    def stamp(idx):
        if stamps: e(f"s_memrealtime {sp(sSTAMP+2*idx)}")
    def dump_stamps():
        if not stamps: return
        e("s_waitcnt lgkmcnt(0)")
        for k in range(16): e(f"v_writelane_b32 v{vT}, s{sSTAMP+2*k}, {k}")
        e(f"""
        s_lshl_b32 s{sT3}, s2, 3
        s_add_u32 s{sT3}, s{sT3}, s{sWAVE}
        s_lshl_b32 s{sT3}, s{sT3}, 1
        s_add_u32 s{sT3}, s{sT3}, s{sIT}
        s_lshl_b32 s{sT3}, s{sT3}, 6
        s_add_u32 s{sT3}, s{sT3}, {W_STAMP}
        v_lshlrev_b32 v11, 2, v{vLANE}
        v_add_u32 v11, s{sT3}, v11
        s_mov_b64 exec, 0xffff
        global_store_dword v11, v{vT}, {sp(sWS)}
        s_mov_b64 exec, -1
        """)
    def base(dst, src, *adds):
        const = sum(x for x in adds if isinstance(x, int))
        regs = [x for x in adds if not isinstance(x, int)]
        cur = src
        for r in regs + ([const] if const else []):
            e(f"s_add_u32 s{dst}, s{cur}, {r}\ns_addc_u32 s{dst+1}, s{cur+1}, 0"); cur = dst
        if cur == src: e(f"s_mov_b64 {sp(dst)}, {sp(src)}")
    def st_intra(instrs):
        slow = a.newlabel('SLOW'); back = a.newlabel('BACK')
        e(f"s_cmp_eq_u32 s{sFAST}, 0\ns_cbranch_scc1 {slow}")
        for i in instrs: e(i)
        e(f"{back}:")
        ool.append((slow, [i + " sc1" if i.startswith('global_') else i for i in instrs], back))
    def poll(loads, regs, mid=None):
        top = a.newlabel('POLL'); first = a.newlabel('PF')
        if mid:
            for l in loads: e(l)
            mid()
            e(f"s_branch {first}")
        e(f"{top}:")
        for l in loads: e(l)
        e(f"s_add_u32 s{sSPIN}, s{sSPIN}, 1\ns_cmp_gt_u32 s{sSPIN}, {SPIN_LIMIT}\ns_cbranch_scc1 L_exit")
        if mid: e(f"{first}:")
        e("s_waitcnt vmcnt(0)")
        regs = list(regs)
        e(f"v_max3_u32 v{vT}, v{regs[0]}, v{regs[1]}, v{regs[2]}")
        k = 3
        while k < len(regs):
            if k + 1 < len(regs): e(f"v_max3_u32 v{vT}, v{regs[k]}, v{regs[k+1]}, v{vT}"); k += 2
            else: e(f"v_max_u32 v{vT}, v{regs[k]}, v{vT}"); k += 1
        e(f"v_cmp_eq_u32 vcc, -1, v{vT}\ns_cbranch_vccnz {top}")
    def trfrags(dst, addr, offs):
        for i, (o0, o1) in enumerate(offs):
            e(f"ds_read_b64_tr_b16 {vr(dst+4*i,2)}, v{addr} offset:{o0}")
            e(f"ds_read_b64_tr_b16 {vr(dst+4*i+2,2)}, v{addr} offset:{o1}")
    def dma(n, ldsbase, voff, sbase, step, wnt=wnt):
        for i in range(n):
            if throttle[0] is not None: e(f"s_waitcnt vmcnt({throttle[0]})")
            e(f"s_mov_b32 m0, {ldsbase + i*1024}")
            e(f"global_load_lds_dwordx4 v{voff}, {sp(sbase)} {wnt}")
            if i + 1 < n: e(f"v_add_u32 v{voff}, {step}, v{voff}")
    def dma_wo(t0=100, t1=101):
        e(f"""
        ; wo tile: rows (2g+h)*256 + r, cols 32cg.. ; lane -> row lane/4, piece lane%4
        s_lshl_b32 s{sT1}, s{sG}, 1
        s_add_u32 s{sT1}, s{sT1}, s{sH}
        s_mul_i32 s{sT1}, s{sT1}, {256*896}
        s_lshl_b32 s{sT2}, s{sCG}, 6
        s_add_u32 s{sT1}, s{sT1}, s{sT2}
        v_lshrrev_b32 v{t0}, 2, v{vLANE}
        v_mul_u32_u24 v{t0}, 896, v{t0}
        v_and_b32 v{t1}, 3, v{vLANE}
        v_lshl_add_u32 v{t0}, v{t1}, 4, v{t0}
        v_add_u32 v{t0}, s{sT1}, v{t0}
        """)
        dma(16, L_WO, t0, sWO, 16*896)
    def dma_gu(t0=100, t1=101):
        e(f"""
        s_mul_i32 s{sT1}, s{sG}, 448
        s_lshl_b32 s{sT2}, s{sIDX}, 4
        s_add_u32 s{sT1}, s{sT1}, s{sT2}
        v_mul_u32_u24 v{t0}, 3584, v{vLANE}
        v_add_u32 v{t0}, s{sT1}, v{t0}
        v_mov_b32 v{t1}, v{t0}
        """)
        dma(7, L_WG, t0, sWG, 64*3584, lnt)
        dma(7, L_WU, t1, sWU, 64*3584, lnt)
    def dma_wd(t0=100, t1=101):
        e(f"""
        s_mul_i32 s{sT1}, s{sG}, {224*896}
        s_lshl_b32 s{sT2}, s{sIDX}, 5
        s_add_u32 s{sT1}, s{sT1}, s{sT2}
        v_lshrrev_b32 v{t0}, 1, v{vLANE}
        v_mul_u32_u24 v{t0}, 896, v{t0}
        v_and_b32 v{t1}, 1, v{vLANE}
        v_lshl_add_u32 v{t0}, v{t1}, 4, v{t0}
        v_add_u32 v{t0}, s{sT1}, v{t0}
        """)
        dma(7, L_WD, t0, sWD, 32*896, lnt)
    def prefetch_mlp(t0=96, t1=97, d=128):
        e(f"""
        v_lshrrev_b32 v{t0}, 3, v{vLANE}
        v_mul_u32_u24 v{t0}, 3584, v{t0}
        v_and_b32 v{t1}, 7, v{vLANE}
        v_min_u32 v{t1}, 6, v{t1}
        v_lshl_add_u32 v{t0}, v{t1}, 6, v{t0}
        s_mul_i32 s{sT1}, s{sG}, 448
        s_mul_i32 s{sT2}, s{sIDX}, {16*3584}
        s_add_u32 s{sT1}, s{sT1}, s{sT2}
        v_add_u32 v{t0}, s{sT1}, v{t0}
        v_add_u32 v{t1}, {8*3584}, v{t0}
        global_load_dword v{d}, v{t0}, {sp(sWG)} {pnt}
        global_load_dword v{d}, v{t1}, {sp(sWG)} {pnt}
        global_load_dword v{d}, v{t0}, {sp(sWU)} {pnt}
        global_load_dword v{d}, v{t1}, {sp(sWU)} {pnt}
        s_mul_i32 s{sT1}, s{sG}, {224*896}
        s_mul_i32 s{sT2}, s{sIDX}, 7168
        s_add_u32 s{sT1}, s{sT1}, s{sT2}
        v_lshlrev_b32 v{t0}, 6, v{vLANE}
        v_add_u32 v{t0}, s{sT1}, v{t0}
        v_min_u32 v{t1}, 47, v{vLANE}
        v_lshlrev_b32 v{t1}, 6, v{t1}
        v_add_u32 v{t1}, s{sT1}, v{t1}
        v_add_u32 v{t1}, 4096, v{t1}
        global_load_dword v{d}, v{t0}, {sp(sWD)} {pnt}
        global_load_dword v{d}, v{t1}, {sp(sWD)} {pnt}
        """)
    def warm_slots(t0, t1, d):
        if not warm: return
        e(f"""
        s_lshl_b32 s{sT1}, s{sG3}, 2
        s_lshr_b32 s{sT2}, s{sIDX}, 4
        s_add_u32 s{sT1}, s{sT1}, s{sT2}
        s_lshl_b32 s{sT1}, s{sT1}, 14
        s_and_b32 s{sT2}, s{sIDX}, 15
        s_lshl_b32 s{sT2}, s{sT2}, 9
        s_add_u32 s{sT1}, s{sT1}, s{sT2}
        s_add_u32 s{sT1}, s{sT1}, s{sPAR}
        s_add_u32 s{sT1}, s{sT1}, {W_O}
        v_bfe_u32 v{t0}, v{vLANE}, 3, 1
        v_lshlrev_b32 v{t0}, 15, v{t0}
        v_and_b32 v{t1}, 7, v{vLANE}
        v_lshl_add_u32 v{t0}, v{t1}, 6, v{t0}
        v_add_u32 v{t0}, s{sT1}, v{t0}
        s_mov_b64 exec, 0xffff
        global_load_dword v{d}, v{t0}, {sp(sIB)} sc1
        s_mul_i32 s{sT1}, s{sIDX}, 12
        v_add_u32 v{t1}, s{sT1}, v{vLANE}
        v_lshrrev_b32 v{t0}, 7, v{t1}
        v_lshlrev_b32 v{t0}, 14, v{t0}
        v_and_b32 v{t1}, 127, v{t1}
        v_lshl_add_u32 v{t0}, v{t1}, 6, v{t0}
        s_mul_i32 s{sT1}, s{sG3}, {3*K16}
        s_add_u32 s{sT1}, s{sT1}, s{sPAR}
        s_add_u32 s{sT1}, s{sT1}, {W_M}
        v_add_u32 v{t0}, s{sT1}, v{t0}
        s_mov_b64 exec, 0xfff
        global_load_dword v{d}, v{t0}, {sp(sIB)} sc1
        s_lshl_b32 s{sT1}, s{sG3}, 14
        s_add_u32 s{sT1}, s{sT1}, s{sPAR}
        s_lshl_b32 s{sT2}, s{sIDX}, 8
        s_add_u32 s{sT1}, s{sT1}, s{sT2}
        v_lshlrev_b32 v{t0}, 6, v{vLANE}
        v_add_u32 v{t0}, s{sT1}, v{t0}
        s_mov_b64 exec, 0xf
        global_load_dword v{d}, v{t0}, {sp(sIB)} sc1
        s_mov_b64 exec, -1
        """)
    def set_gx():
        e(f"""
        s_cmp_eq_u32 s{sFAST}, 0
        s_cselect_b32 s{sG3}, s{sG}, s{sXCC}
        s_lshr_b32 s{sPAR}, s{sG3}, 2
        s_lshl_b32 s{sPAR}, s{sPAR}, 13
        s_and_b32 s{sG3}, s{sG3}, 3
        """)
    def kvaddr():
        e(f"""
        s_lshr_b32 s{sT0}, s{sIDX}, 2
        s_lshl_b32 s{sT0}, s{sT0}, 24
        s_lshl_b32 s{sT1}, s{sG}, 21
        s_add_u32 s{sT0}, s{sT0}, s{sT1}
        s_and_b32 s{sT1}, s{sIDX}, 3
        s_lshl_b32 s{sT1}, s{sT1}, 17
        s_add_u32 s{sT0}, s{sT0}, s{sT1}
        s_lshl_b32 s{sT1}, s{sWAVE}, 14
        s_add_u32 s{sT0}, s{sT0}, s{sT1}
        s_add_u32 s{sT0}, s{sT0}, {3072*512}
        ; K lane offset: key = 4*(n%4) + n/4 ; + quad*16
        v_and_b32 v96, 3, v{vN}
        v_lshlrev_b32 v96, 11, v96
        v_lshrrev_b32 v97, 2, v{vN}
        v_lshl_add_u32 v96, v97, 9, v96
        v_lshl_add_u32 v96, v{vQ}, 4, v96
        v_add_u32 v96, s{sT0}, v96            ; K tile 0
        v_add_u32 v97, {K8}, v96              ; K tile 1
        v_lshlrev_b32 v98, 4, v{vN}
        v_lshl_add_u32 v98, v{vQ}, 9, v98
        v_add_u32 v98, s{sT0}, v98
        v_add_u32 v98, 4096, v98
        v_add_u32 v99, {K8}, v98
        """)
    def kvloads():
        for t in range(2):
            for i in range(8):
                e(f"global_load_dwordx4 {vr(vKF+32*t+4*i)}, v{96+t}, {sp(sK)} offset:{64*i} {nt}")
        for t in range(2):
            for r in range(4):
                for c in range(2):
                    e(f"global_load_dwordx4 {vr(vVF+32*t+8*r+4*c)}, v{98+t}, {sp(sV)} offset:{2048*r+256*c-4096} {nt}")
    def common_consts():
        e(f"""
        ; masks: position j = n%8 -> reg j/2, half j%2
        v_and_b32 v100, 1, v{vN}
        v_lshlrev_b32 v100, 4, v100
        v_mov_b32 v101, 0xffff
        v_lshlrev_b32 v101, v100, v101
        v_bfe_u32 v100, v{vN}, 1, 2
        """)
        for r in range(4):
            e(f"v_cmp_eq_u32 vcc, {r}, v100\nv_cndmask_b32 v{vMASK+r}, 0, v101, vcc")
        e(f"""
        v_lshrrev_b32 v100, 3, v{vN}
        v_lshlrev_b32 v{vQSR}, 9, v100
        v_lshl_add_u32 v{vQSR}, v{vQ}, 4, v{vQSR}
        v_add_u32 v{vQSR}, {L_QS}, v{vQSR}
        ; OC write: wave*2048 + (quad/2)*1024 + n*32 + (quad%2)*16   (+512 for c=1)
        v_lshrrev_b32 v101, 1, v{vQ}
        v_lshlrev_b32 v{vOCW}, 10, v101
        v_lshl_add_u32 v{vOCW}, v{vN}, 5, v{vOCW}
        v_and_b32 v101, 1, v{vQ}
        v_lshl_add_u32 v{vOCW}, v101, 4, v{vOCW}
        s_lshl_b32 s{sT1}, s{sWAVE}, 11
        s_add_u32 s{sT1}, s{sT1}, {L_OC}
        v_add_u32 v{vOCW}, s{sT1}, v{vOCW}
        s_lshl_b32 s{sT1}, s{sWAVE}, 3
        s_add_u32 s{sT1}, s{sT1}, {L_ML}
        v_lshlrev_b32 v{vMLW}, 6, v100
        v_add_u32 v{vMLW}, s{sT1}, v{vMLW}
        """)
    def p3_consts():
        e(f"""
        v_lshlrev_b32 v{pA}, 4, v{vLANE}
        v_lshlrev_b32 v{pOF}, 9, v{vN}
        v_lshl_add_u32 v{pOF}, v{vQ}, 4, v{pOF}
        v_lshlrev_b32 v{pML}, 3, v{vN}
        v_and_b32 v100, 1, v{vN}
        v_lshlrev_b32 v{pD1}, 14, v100
        v_bfe_u32 v100, v{vN}, 1, 1
        v_lshl_add_u32 v{pD1}, v100, 13, v{pD1}
        v_lshrrev_b32 v100, 2, v{vN}
        v_lshl_add_u32 v{pD1}, v100, 6, v{pD1}
        v_lshl_add_u32 v{pD1}, v{vQ}, 4, v{pD1}
        v_lshl_add_u32 v100, v{vQ}, 3, v100      ; 8q + r
        v_and_b32 v101, 3, v{vN}
        v_lshlrev_b32 v{tW64}, 6, v100
        v_lshl_add_u32 v{tW64}, v101, 3, v{tW64}
        s_mov_b32 s{sE3}, 0xaaaaaaaa
        s_mov_b32 s{sE3+1}, 0xaaaaaaaa
        """)
    def chain_consts():
        b, kh, q2, q1, t0, t1 = 4, 5, 6, 7, 8, 9
        e(f"""
        v_lshrrev_b32 v{t0}, 2, v{vN}
        v_lshl_add_u32 v{t0}, v{vQ}, 3, v{t0}    ; 8q + r
        v_and_b32 v{t1}, 3, v{vN}
        v_lshlrev_b32 v{tW32}, 5, v{t0}
        v_lshl_add_u32 v{tW32}, v{t1}, 3, v{tW32}
        v_lshlrev_b32 v{tGU}, 4, v{t0}
        v_and_b32 v{t0}, 1, v{t1}
        v_lshl_add_u32 v{tGU}, v{t0}, 3, v{tGU}
        v_lshrrev_b32 v{t0}, 1, v{t1}
        v_mul_u32_u24 v{t0}, 7168, v{t0}
        v_add_u32 v{tGU}, v{t0}, v{tGU}
        """)
    def chain_consts2():
        b, kh, q2, q1, t0, t1 = 4, 5, 6, 7, 8, 9
        e(f"""
        v_and_b32 v{b}, 7, v{vN}
        v_lshrrev_b32 v{kh}, 3, v{vN}
        v_lshrrev_b32 v{q2}, 1, v{vQ}
        v_and_b32 v{q1}, 1, v{vQ}
        v_and_b32 v{pXST}, 31, v{vLANE}
        v_lshlrev_b32 v{pXST}, 3, v{pXST}
        v_bfe_u32 v{pSST}, v{vLANE}, 2, 3
        v_lshlrev_b32 v{pSST}, 8, v{pSST}
        v_mul_u32_u24 v{pXLD}, 14, v{kh}
        v_add_u32 v{pXLD}, v{pXLD}, v{q2}
        v_lshlrev_b32 v{pXLD}, 8, v{pXLD}
        v_lshl_add_u32 v{pXLD}, v{b}, 5, v{pXLD}
        v_lshl_add_u32 v{pXLD}, v{q1}, 4, v{pXLD}
        v_lshlrev_b32 v{pSLD}, 8, v{b}
        v_lshrrev_b32 v{t0}, 3, v{vLANE}
        v_lshl_add_u32 v{pSLD}, v{t0}, 5, v{pSLD}
        v_lshlrev_b32 v{pHST}, 4, v{b}
        v_lshl_add_u32 v{pHST}, v{q1}, 3, v{pHST}
        v_lshl_add_u32 v{pHST}, v{q2}, 2, v{pHST}
        v_mul_u32_u24 v{pHLD}, 12, v{kh}
        v_add_u32 v{pHLD}, v{pHLD}, v{vQ}
        v_lshlrev_b32 v{pHLD}, 7, v{pHLD}
        v_lshl_add_u32 v{pHLD}, v{b}, 4, v{pHLD}
        v_lshlrev_b32 v{pA1}, 6, v{b}
        v_lshl_add_u32 v{pA1}, v{vQ}, 4, v{pA1}
        v_add_u32 v{pA1B}, {K8}, v{pA1}
        v_lshlrev_b32 v{pQST}, 10, v{b}
        v_lshl_add_u32 v{pQST}, v{vQ}, 3, v{pQST}
        """)
    def load_w(n, addr, ldsbase, istep, ustep):
        trfrags(vW, addr, [(ldsbase + i*istep, ldsbase + i*istep + ustep) for i in range(n)])
    def colsum():
        for k in range(4): e(f"v_mov_b32 v{vONE+k}, 0x3f803f80")
        e("s_waitcnt lgkmcnt(0)")
        for i in range(14):
            e(f"v_mfma_f32_16x16x32_bf16 {vr(vCS)}, {vr(vW+4*i)}, {vr(vONE)}, {vr(vCS) if i else '0'}")

    e(f"""
    s_cmp_ge_u32 s2, 256
    s_cbranch_scc1 L_exit
    s_load_dwordx16 s[4:19], s[0:1], 0
    s_load_dwordx8 s[20:27], s[0:1], 64
    v_readfirstlane_b32 s{sWAVE}, v0
    s_and_b32 s{sG}, s2, 7
    s_lshr_b32 s{sIDX}, s2, 3
    s_lshr_b32 s{sWAVE}, s{sWAVE}, 6
    s_mov_b32 s{sIT}, 0
    s_mov_b32 s{sSPIN}, 0
    v_and_b32 v{vN}, 15, v0
    v_and_b32 v{vLANE}, 63, v0
    v_lshrrev_b32 v{vQ}, 4, v{vLANE}
    s_cmp_ge_u32 s{sIDX}, 14
    s_cselect_b32 s{sH}, 1, 0
    s_mul_i32 s{sT1}, s{sH}, 14
    s_sub_u32 s{sCG}, s{sIDX}, s{sT1}
    s_mov_b32 s{sCL}, 0x3db8aa3b          ; log2(e)/16
    """)
    if stamps:
        for k in range(32): e(f"s_mov_b32 s{sSTAMP+k}, 0")
    stamp(0)
    e(f"""
    s_cmp_eq_u32 s{sWAVE}, 0
    s_cbranch_scc1 L_chain_pro
    """)
    e(f"""
    s_getreg_b32 s{sXCC}, hwreg(HW_REG_XCC_ID, 0, 4)
    s_and_b32 s{sXCC}, s{sXCC}, 7
    s_cmp_eq_u32 s{sWAVE}, 7
    s_cbranch_scc0 L_pre_done
    s_setprio 3
    s_mul_i32 s{sT1}, s2, 5120
    s_add_u32 s{sT1}, s{sT1}, 2048
    v_lshlrev_b32 v108, 4, v{vLANE}
    v_add_u32 v108, s{sT1}, v108
    v_mov_b32 v112, -1
    v_mov_b32 v113, -1
    v_mov_b32 v114, -1
    v_mov_b32 v115, -1
    s_waitcnt lgkmcnt(0)
    """)
    for r in (108,):
        for i in range(0 if no_clear else 5): e(f"global_store_dwordx4 v{r}, v[112:115], {sp(sWS)} offset:{1024*i-2048} {clr}")
    base(sA, sWS, W_EPOCH)
    e(f"s_load_dword s{sTAG}, {sp(sA)}, 0")
    e("L_pre_done:")
    kvaddr()
    e(f"""
    s_waitcnt lgkmcnt(0)
    s_barrier
    s_cmp_lt_u32 s{sWAVE}, 4
    s_cbranch_scc1 L_not_w7
    s_cmp_eq_u32 s{sWAVE}, 7
    s_cbranch_scc0 L_kv0
    s_mul_i32 s{sTAG}, s{sTAG}, 0x9e3779b1
    s_add_u32 s{sTAG}, s{sTAG}, 0x7f4a7c15
    v_mov_b32 v102, s{sXCC}
    v_mov_b32 v103, s{sTAG}
    s_lshl_b32 s{sT1}, s2, 3
    s_add_u32 s{sT1}, s{sT1}, {W_FLAG}
    v_mov_b32 v104, s{sT1}
    s_waitcnt vmcnt(0)
    s_mov_b64 exec, 1
    global_store_dwordx2 v104, v[102:103], {sp(sWS)} sc1
    s_mov_b64 exec, -1
    s_setprio 0
    """)
    stamp(1)
    e(f"""
    L_kv0:
    s_lshl_b32 s{sT1}, s{sWAVE}, 14
    s_and_b32 s{sT2}, s{sWAVE}, 1
    s_lshl_b32 s{sT2}, s{sT2}, 13
    s_sub_u32 s{sT1}, s{sT2}, s{sT1}
    s_and_b32 s{sT2}, s{sWAVE}, 3
    s_lshl_b32 s{sT2}, s{sT2}, 13
    s_add_u32 s{sT2}, s{sT2}, {L_KV0}
    s_cmp_ge_u32 s{sWAVE}, 6
    s_cbranch_scc1 L_kv0_v
    v_add_u32 v100, s{sT1}, v96
    """)
    for i in range(8):
        e(f"s_add_u32 m0, s{sT2}, {1024*i}")
        e(f"global_load_lds_dwordx4 v100, {sp(sK)} {nt}")
        if i < 7: e(f"v_add_u32 v100, 64, v100")
    e(f"""
    s_branch L_kvload
    L_kv0_v:
    s_sub_u32 s{sT1}, s{sT1}, 4096
    v_add_u32 v100, s{sT1}, v98
    """)
    for i in range(8):
        e(f"s_add_u32 m0, s{sT2}, {1024*i}")
        e(f"global_load_lds_dwordx4 v100, {sp(sV)} {nt}")
        if i < 7: e(f"v_add_u32 v100, {256 if i % 2 == 0 else 2048-256}, v100")
    e(f"""
    s_branch L_kvload
    L_not_w7:
    """)
    if wo_early:
        e(f"""
        s_cmp_ge_u32 s{sIDX}, 28
        s_cbranch_scc1 L_kvload
        s_cmp_eq_u32 s{sWAVE}, 1
        s_cbranch_scc0 L_kvload
        """)
        dma_wo()
    e("L_kvload:")
    stamp(7)
    kvloads()
    stamp(8)
    if landstamp:
        e("s_waitcnt vmcnt(0)")
        stamp(9)
    common_consts()
    p3_consts()
    e(f"""
    s_mov_b64 {sp(sIB)}, {sp(sWS)}
    s_and_b32 s{sT2}, s{sWAVE}, 3
    s_lshl_b32 s{sT1}, s{sT2}, 9
    s_add_u32 s{sT1}, s{sT1}, {L_OC}
    v_lshlrev_b32 v{cOCR}, 3, v{vLANE}
    v_add_u32 v{cOCR}, s{sT1}, v{cOCR}
    s_lshr_b32 s{sT1}, s{sT2}, 1
    s_lshl_b32 s{sT1}, s{sT1}, 6
    s_add_u32 s{sT1}, s{sT1}, {L_ML}
    v_mov_b32 v{cMLR}, s{sT1}
    v_lshlrev_b32 v{cOST}, 2, v{vLANE}
    s_waitcnt vmcnt(32)
    """)
    if mid_gather:
        e(f"""
        s_cmp_eq_u32 s{sWAVE}, {mid_gather}
        s_cbranch_scc0 L_attn_first
        s_cmp_lt_u32 s{sIDX}, 28
        s_cbranch_scc0 L_attn_first
        s_waitcnt vmcnt(0)
        """)
        stamp(10)
        dma_gu(); dma_wd()
        e("s_waitcnt vmcnt(0)")
        stamp(11)
    e("s_branch L_attn_first")

    e("L_chain_pro:")
    e(f"""
    s_setprio 3
    v_and_b32 v100, 7, v{vN}
    v_lshrrev_b32 v101, 3, v{vN}
    v_mul_u32_u24 v102, 896, v100
    v_mul_u32_u24 v103, 448, v101
    v_add_u32 v102, v102, v103
    v_lshl_add_u32 v102, v{vQ}, 4, v102
    s_lshl_b32 s{sT1}, s{sG}, 10
    s_lshl_b32 s{sT2}, s{sIDX}, 5
    s_add_u32 s{sT1}, s{sT1}, s{sT2}
    v_lshrrev_b32 v106, 1, v{vLANE}
    v_lshlrev_b32 v106, 13, v106
    v_and_b32 v107, 1, v{vLANE}
    v_lshl_add_u32 v106, v107, 4, v106
    v_add_u32 v106, s{sT1}, v106
    ; residual slice: b=(l%32)/4, cq=l%4 : b*896 + j*32 + cq*8   (j clamped to 27)
    s_min_u32 s{sT1}, s{sIDX}, 27
    s_lshl_b32 s{sT1}, s{sT1}, 5
    v_bfe_u32 v103, v{vLANE}, 2, 3
    v_mul_u32_u24 v104, 896, v103
    v_and_b32 v105, 3, v{vLANE}
    v_lshl_add_u32 v104, v105, 3, v104
    v_add_u32 v104, s{sT1}, v104
    s_waitcnt lgkmcnt(0)
    """)
    for i in range(7): e(f"global_load_dwordx4 {vr(vD+4*i)}, v102, {sp(sX)} offset:{64*i}")
    e(f"global_load_dwordx2 v[60:61], v104, {sp(sX)}")
    dma(14, L_WQ, 106, sWQ, 32*8192)
    if mid_gather:
        e(f"s_cmp_lt_u32 s{sIDX}, 28\ns_cbranch_scc0 L_nopf")
        prefetch_mlp(108, 109, 128)
        e("L_nopf:")
    e("s_barrier")
    base(sA, sWS, W_EPOCH)
    e(f"s_load_dword s{sTAG}, {sp(sA)}, 0")
    if touch:
        e(f"v_mov_b32 v110, 0\nv_mov_b32 v111, {2<<20}\ns_mov_b64 exec, 1")
        for sb in (sWG, sWU, sWD, sWO, sOUT):
            e(f"global_load_dword v128, v110, {sp(sb)} nt")
        e(f"global_load_dword v128, v111, {sp(sWO)} nt")
        e("s_mov_b64 exec, -1")
    p3_consts()
    chain_consts(); chain_consts2()
    e(f"""
    s_mov_b32 s{sE0}, 0x00ff00ff
    s_mov_b32 s{sE0+1}, 0x00ff00ff          ; lanes n<8
    s_mov_b32 s{sE1}, 0x11111111
    s_mov_b32 s{sE1+1}, 0                   ; l<32, l%4==0
    s_mov_b32 s{sE2}, -1
    s_mov_b32 s{sE2+1}, 0x00ffffff          ; lanes < 56
    s_getreg_b32 s{sXCC}, hwreg(HW_REG_XCC_ID, 0, 4)
    s_and_b32 s{sXCC}, s{sXCC}, 7
    s_lshr_b32 s{sNEAR}, s{sXCC}, 2
    s_lshl_b32 s{sNEAR}, s{sNEAR}, 13
    s_mov_b32 s{sFAST}, 0
    s_mov_b32 s{sINV}, 0x3b124925           ; 1/448
    s_mov_b32 s{sEPS}, 0x3727c5ac           ; 1e-5
    s_mov_b32 s{sNL2E}, 0xbfb8aa3b          ; -log2(e)
    s_mov_b64 {sp(sIB)}, {sp(sWS)}
    s_lshl_b32 s{sT1}, s{sG}, 14
    """)
    base(sQB, sWS, f"s{sT1}", W_Q0)
    vS1, vS2 = vST, vST+1
    e(f"""
    v_mov_b32 v{vONE}, 0x3f803f80
    v_mov_b32 v{vS1}, 0
    v_mov_b32 v{vS2}, 0
    s_waitcnt vmcnt({14}) lgkmcnt(0)
    s_mul_i32 s{sTAG}, s{sTAG}, 0x9e3779b1
    s_add_u32 s{sTAG}, s{sTAG}, 0x7f4a7c15
    """)
    for i in range(28):
        e(f"v_dot2c_f32_bf16 v{vS1}, v{vD+i}, v{vONE}\nv_dot2c_f32_bf16 v{vS2}, v{vD+i}, v{vD+i}")
    e(f"""
    v_lshlrev_b32 v{vRES}, 16, v60
    v_and_b32 v{vRES+1}, 0xffff0000, v60
    v_lshlrev_b32 v{vRES+2}, 16, v61
    v_and_b32 v{vRES+3}, 0xffff0000, v61
    s_waitcnt vmcnt(0)
    """)
    stamp(1)
    load_w(14, tW32, L_WQ, 1024, 128)
    colsum()
    e("s_branch L_p1_core")

    vQF = vD; vS = 64; vAF = 72; vAC = 80; vM = 88; vL = 89; vX0 = 90; vX1 = 91
    def p2(waits):
        stamp(2)
        for i in range(8): e(f"ds_read_b128 {vr(vQF+4*i)}, v{vQSR} offset:{64*i}")
        e(f"v_mov_b32 v{vX0}, {L_FL}\nds_read_b32 v{vX1}, v{vX0}")
        for t in range(2):
            (e(f"s_waitcnt vmcnt({24-8*t})") if waits else None)
            for i in range(8):
                if t == 0: e(f"s_waitcnt lgkmcnt({8-i})")
                e(f"v_mfma_f32_16x16x32_bf16 {vr(vS+4*t)}, {vr(vKF+32*t+4*i)}, {vr(vQF+4*i)}, {vr(vS+4*t) if i else '0'}")
        e(f"""
        s_waitcnt lgkmcnt(0)
        v_readfirstlane_b32 s{sFAST}, v{vX1}
        s_cmp_eq_u32 s{sFAST}, 0
        s_cselect_b32 s{sG3}, s{sG}, s{sXCC}
        s_lshr_b32 s{sPAR}, s{sG3}, 2
        s_lshl_b32 s{sPAR}, s{sPAR}, 13
        s_and_b32 s{sG3}, s{sG3}, 3
        """)
        e(f"""
        v_max3_f32 v{vM}, v{vS}, v{vS+1}, v{vS+2}
        v_max3_f32 v{vM}, v{vS+3}, v{vS+4}, v{vM}
        v_max3_f32 v{vM}, v{vS+5}, v{vS+6}, v{vM}
        v_max_f32 v{vM}, v{vS+7}, v{vM}
        v_mov_b32 v{vX0}, v{vM}
        v_permlane32_swap_b32 v{vM}, v{vX0}
        v_max_f32 v{vM}, v{vM}, v{vX0}
        v_mov_b32 v{vX0}, v{vM}
        v_permlane16_swap_b32 v{vM}, v{vX0}
        v_max_f32 v{vM}, v{vM}, v{vX0}
        v_mul_f32 v{vM}, s{sCL}, v{vM}
        """)
        for k in range(8): e(f"v_fma_f32 v{vS+k}, v{vS+k}, s{sCL}, -v{vM}")
        for k in range(8): e(f"v_exp_f32 v{vS+k}, v{vS+k}")
        e(f"v_add_f32 v{vL}, v{vS}, v{vS+1}")
        for k in range(2, 8): e(f"v_add_f32 v{vL}, v{vL}, v{vS+k}")
        for k in range(8): e(f"v_cvt_pk_bf16_f32 v{vS+k}, v{vS+k}, v{vS+k}")
        for k in range(8):
            af = vAF + 4*(k % 2)
            for r in range(4): e(f"v_and_b32 v{af+r}, v{vS+k}, v{vMASK+r}")
            (e(f"s_waitcnt vmcnt({14-2*k})") if waits else None)
            for c in range(2):
                e(f"v_mfma_f32_16x16x32_bf16 {vr(vAC+4*c)}, {vr(af)}, {vr(vVF+8*k+4*c)}, {vr(vAC+4*c) if k else '0'}")
        e(f"""
        v_mov_b32 v{vX0}, v{vL}
        v_permlane32_swap_b32 v{vL}, v{vX0}
        v_add_f32 v{vL}, v{vL}, v{vX0}
        v_mov_b32 v{vX0}, v{vL}
        v_permlane16_swap_b32 v{vL}, v{vX0}
        v_add_f32 v{vL}, v{vL}, v{vX0}
        s_mov_b64 exec, 0x101
        ds_write_b64 v{vMLW}, v[{vM}:{vL}]
        s_mov_b64 exec, -1
        ds_write_b128 v{vOCW}, {vr(vAC)}
        ds_write_b128 v{vOCW}, {vr(vAC+4)} offset:512
        s_mul_i32 s{sT1}, s{sG3}, {3*K16}
        s_add_u32 s{sT1}, s{sT1}, s{sPAR}
        """)

    e("L_attn_first:")
    e("s_barrier")
    p2(True)
    e("s_branch L_attn_tail")
    e("L_attn:")
    e("s_barrier")
    e("L_attn2:")
    p2(False)
    e("L_attn_tail:")
    base(sMB, sIB, f"s{sT1}", W_M)
    stamp(3)
    e(f"""
    s_waitcnt lgkmcnt(0)
    s_barrier
    s_cmp_lt_u32 s{sWAVE}, 2
    s_cbranch_scc1 L_p3
    s_cmp_lt_u32 s{sWAVE}, 4
    s_cbranch_scc1 L_bar3
    """)
    for k in range(4): e(f"ds_read_b128 {vr(vD+4*k)}, v{cMLR} offset:{16*k}")
    for w in range(8): e(f"ds_read_b64 {vr(vD+16+2*w,2)}, v{cOCR} offset:{2048*w}")
    e(f"""
    s_bfe_u32 s{sT1}, s{sWAVE}, 0x10001
    s_lshl_b32 s{sT2}, s{sG3}, 1
    s_add_u32 s{sT2}, s{sT2}, s{sT1}
    s_lshl_b32 s{sT2}, s{sT2}, 1
    s_lshr_b32 s{sT3}, s{sIDX}, 4
    s_add_u32 s{sT2}, s{sT2}, s{sT3}
    s_lshl_b32 s{sT2}, s{sT2}, 14
    s_add_u32 s{sT2}, s{sT2}, s{sPAR}
    s_and_b32 s{sT3}, s{sIDX}, 15
    s_lshl_b32 s{sT3}, s{sT3}, 9
    s_add_u32 s{sT2}, s{sT2}, s{sT3}
    s_and_b32 s{sT3}, s{sWAVE}, 1
    s_lshl_b32 s{sT3}, s{sT3}, 8
    s_add_u32 s{sT2}, s{sT2}, s{sT3}
    """)
    base(sA, sIB, f"s{sT2}", W_O)
    e(f"""
    s_lshl_b32 s{sT1}, s{sT1}, 8
    s_lshl_b32 s{sT3}, s{sIDX}, 3
    s_add_u32 s{sT1}, s{sT1}, s{sT3}
    """)
    base(sB, sMB, f"s{sT1}", 7168)
    mm = [vD + 2*w for w in range(8)]; ll = [vD + 2*w + 1 for w in range(8)]
    e(f"""
    s_waitcnt lgkmcnt(8)
    v_max3_f32 v{vM}, v{mm[0]}, v{mm[1]}, v{mm[2]}
    v_max3_f32 v{vM}, v{mm[3]}, v{mm[4]}, v{vM}
    v_max3_f32 v{vM}, v{mm[5]}, v{mm[6]}, v{vM}
    v_max_f32 v{vM}, v{mm[7]}, v{vM}
    """)
    for w in range(8): e(f"v_sub_f32 v{mm[w]}, v{mm[w]}, v{vM}")
    for w in range(8): e(f"v_exp_f32 v{mm[w]}, v{mm[w]}")
    e(f"v_mul_f32 v{vL}, v{mm[0]}, v{ll[0]}")
    for w in range(1, 8): e(f"v_fmac_f32 v{vL}, v{mm[w]}, v{ll[w]}")
    e(f"v_rcp_f32 v{vX0}, v{vL}")
    e("s_waitcnt lgkmcnt(0)")
    o0, o1 = 92, 93
    e(f"v_mul_f32 v{o0}, v{mm[0]}, v{vD+16}\nv_mul_f32 v{o1}, v{mm[0]}, v{vD+17}")
    for w in range(1, 8):
        e(f"v_fmac_f32 v{o0}, v{mm[w]}, v{vD+16+2*w}\nv_fmac_f32 v{o1}, v{mm[w]}, v{vD+17+2*w}")
    e(f"""
    v_mul_f32 v{o0}, v{o0}, v{vX0}
    v_mul_f32 v{o1}, v{o1}, v{vX0}
    v_cvt_pk_bf16_f32 v{o0}, v{o0}, v{o1}
    v_min_u32 v{o0}, -2, v{o0}
    v_min_u32 v{vM}, -2, v{vM}
    v_min_u32 v{vL}, -2, v{vL}
    v_mov_b32 v{vX1}, 0
    """)
    st_intra([f"global_store_dword v{cOST}, v{o0}, {sp(sA)}",
              "s_mov_b64 exec, 1",
              f"global_store_dwordx2 v{vX1}, v[{vM}:{vL}], {sp(sB)}",
              "s_mov_b64 exec, -1"])
    stamp(4)
    e("L_bar3:")
    e("s_barrier")
    e("L_next:")
    dump_stamps()
    e(f"""
    s_cmp_eq_u32 s{sIT}, 1
    s_cbranch_scc1 L_exit
    s_cmp_lt_u32 s{sIDX}, 28
    s_cbranch_scc0 L_bar4
    s_cmp_eq_u32 s{sWAVE}, 2
    s_cbranch_scc1 L_gather
    s_cmp_eq_u32 s{sWAVE}, 3
    s_cbranch_scc0 L_bar4
    s_mul_i32 s{sT1}, s2, 6144
    s_add_u32 s{sT1}, s{sT1}, {ITSTRIDE + 3072}
    v_add_u32 v108, s{sT1}, v{pA}
    v_mov_b32 v112, -1
    v_mov_b32 v113, -1
    v_mov_b32 v114, -1
    v_mov_b32 v115, -1
    """)
    for i in range(0 if no_clear else 6): e(f"global_store_dwordx4 v108, v[112:115], {sp(sWS)} offset:{1024*i-3072} sc1")
    e(f"""
    L_bar4w:
    s_waitcnt vmcnt(0)
    L_bar4:
    s_barrier
    s_mov_b32 s{sIT}, 1
    """)
    base(sIB, sWS, ITSTRIDE)
    e("s_branch L_attn")

    e("L_p3:")
    e(f"""
    s_cmp_lt_u32 s{sIDX}, 28
    s_cbranch_scc1 L_p3_go
    s_barrier
    s_cmp_eq_u32 s{sWAVE}, 1
    s_cbranch_scc1 L_next
    s_cmp_eq_u32 s{sIT}, 1
    s_cbranch_scc1 L_exit
    s_barrier
    """)
    load_w(14, tW32, L_WQ, 1024, 128)
    colsum()
    e("s_branch L_p1")
    e("L_p3_go:")
    def wo_frags():
        trfrags(vW, tW64, [(L_WO + i*2048 + ct*32, L_WO + i*2048 + 256 + ct*32) for ct in range(2) for i in range(8)])
    e(f"""
    s_mov_b32 s{sT3}, s{sWAVE}               ; rt
    s_lshl_b32 s{sT2}, s{sG3}, 1
    s_add_u32 s{sT2}, s{sT2}, s{sH}
    s_lshl_b32 s{sT2}, s{sT2}, 1
    s_add_u32 s{sT2}, s{sT2}, s{sT3}
    s_lshl_b32 s{sT2}, s{sT2}, 14
    s_add_u32 s{sT2}, s{sT2}, s{sPAR}
    """)
    base(sA, sIB, f"s{sT2}", W_O)
    e(f"""
    s_lshl_b32 s{sT1}, s{sH}, 8
    s_lshl_b32 s{sT2}, s{sT3}, 7
    s_add_u32 s{sT1}, s{sT1}, s{sT2}
    """)
    base(sB, sMB, f"s{sT1}", 7168)
    e(f"""
    s_lshl_b32 s{sT1}, s{sCG}, 15
    s_lshl_b32 s{sT2}, s{sG}, 1
    s_add_u32 s{sT2}, s{sT2}, s{sH}
    s_lshl_b32 s{sT2}, s{sT2}, 9
    s_add_u32 s{sT1}, s{sT1}, s{sT2}
    s_lshl_b32 s{sT2}, s{sT3}, 8
    s_add_u32 s{sT1}, s{sT1}, s{sT2}
    """)
    base(sC, sIB, f"s{sT1}", W_D1)
    e(f"""
    s_lshl_b32 s{sT1}, s{sIDX}, 14
    s_add_u32 s{sT1}, s{sT1}, s{sNEAR}
    """)
    base(sD, sIB, f"s{sT1}", W_D1 + 4096)
    e(f"s_waitcnt vmcnt({(0 if mid_gather else 6) + (3 if warm else 0)})")
    e("s_barrier")
    stamp(4)
    pac = 16; pml = 24; ptm = 26
    def c_mid():
        wo_frags()
        e("s_waitcnt lgkmcnt(0)")
    poll([f"global_load_dwordx2 v[{pml}:{pml+1}], v{pML}, {sp(sB)} sc1"] +
         [f"global_load_dwordx4 {vr(vD+4*i)}, v{pOF}, {sp(sA)} offset:{64*i} sc1" for i in range(8)],
         [pml, pml+1] + list(range(vD, vD+32)), mid=c_mid)
    stamp(5)
    for i in range(8):
        for ct in range(2):
            e(f"v_mfma_f32_16x16x32_bf16 {vr(pac+4*ct)}, {vr(vW+32*ct+4*i)}, {vr(vD+4*i)}, {vr(pac+4*ct) if i else '0'}")
    dq1 = "quad_perm:[1,0,3,2] row_mask:0xf bank_mask:0xf"; dq2 = "quad_perm:[2,3,0,1] row_mask:0xf bank_mask:0xf"
    e(f"""
    v_max_f32_dpp v{ptm}, v{pml}, v{pml} {dq1}
    v_max_f32_dpp v{ptm}, v{ptm}, v{ptm} {dq2}
    v_sub_f32 v{pml}, v{pml}, v{ptm}
    v_exp_f32 v{pml}, v{pml}
    v_mul_f32 v{pml}, v{pml}, v{pml+1}
    v_add_f32_dpp v{ptm}, v{pml}, v{pml} {dq1}
    v_add_f32_dpp v{ptm}, v{ptm}, v{ptm} {dq2}
    v_rcp_f32 v{ptm}, v{ptm}
    v_mul_f32 v{pml}, v{pml}, v{ptm}
    """)
    for k in range(8): e(f"v_mul_f32 v{pac+k}, v{pac+k}, v{pml}")
    for k in range(8): e(f"v_add_f32_dpp v{pac+k}, v{pac+k}, v{pac+k} {dq1}")
    for k in range(8): e(f"v_add_f32_dpp v{pac+k}, v{pac+k}, v{pac+k} {dq2}")
    for k in range(4): e(f"v_cndmask_b32 v{pac+k}, v{pac+k}, v{pac+4+k}, {sp(sE3)}")
    for k in range(4): e(f"v_min_u32 v{pac+k}, -2, v{pac+k}")
    e(f"global_store_dwordx4 v{pD1}, {vr(pac)}, {sp(sC)} sc1")
    stamp(6)
    e(f"""
    s_cmp_eq_u32 s{sWAVE}, 1
    s_cbranch_scc1 L_next
    """)

    def reduce_phase(nl, sbase, off0, mid, final_ok):
        poll([f"global_load_dwordx4 {vr(vD+4*i)}, v{pA}, {sp(sbase)} offset:{1024*i+off0} sc1" for i in range(nl)],
             range(vD, vD+4*nl), mid=mid)
        n = nl
        while n > 1:
            for i in range(n//2):
                for k in (0, 2):
                    e(f"v_pk_add_f32 {vr(vD+4*i+k,2)}, {vr(vD+4*i+k,2)}, {vr(vD+4*(i+n//2)+k,2)}")
            n //= 2
        for k in range(4): e(f"v_mov_b32 v{vD+4+k}, v{vD+k}")
        for k in range(4): e(f"v_permlane32_swap_b32 v{vD+k}, v{vD+4+k}")
        for k in range(4): e(f"v_add_f32 v{vD+k}, v{vD+k}, v{vD+4+k}")
        for k in range(4): e(f"v_add_f32 v{vD+k}, v{vD+k}, v{vRES+k}")
        e(f"v_cvt_pk_bf16_f32 v{vD+4}, v{vD}, v{vD+1}\nv_cvt_pk_bf16_f32 v{vD+5}, v{vD+2}, v{vD+3}")
    def publish_x():
        e(f"v_min_u32 v{vD+4}, -2, v{vD+4}\nv_min_u32 v{vD+5}, -2, v{vD+5}")
        st_intra(["s_mov_b64 exec, 0xffffffff",
                  f"global_store_dwordx2 v{pXST}, v[{vD+4}:{vD+5}], {sp(sA)}",
                  "s_mov_b64 exec, -1"])
        e(f"""
        v_lshlrev_b32 v{vRES}, 16, v{vD+4}
        v_and_b32 v{vRES+1}, 0xffff0000, v{vD+4}
        v_lshlrev_b32 v{vRES+2}, 16, v{vD+5}
        v_and_b32 v{vRES+3}, 0xffff0000, v{vD+5}
        v_add_f32 v{vD}, v{vRES}, v{vRES+1}
        v_mul_f32 v{vD+1}, v{vRES}, v{vRES}
        v_add_f32 v{vD+2}, v{vRES+2}, v{vRES+3}
        v_fmac_f32 v{vD+1}, v{vRES+1}, v{vRES+1}
        v_add_f32 v{vD}, v{vD}, v{vD+2}
        v_fmac_f32 v{vD+1}, v{vRES+2}, v{vRES+2}
        v_fmac_f32 v{vD+1}, v{vRES+3}, v{vRES+3}
        v_add_f32_dpp v{vD}, v{vD}, v{vD} {dq1}
        v_add_f32_dpp v{vD+1}, v{vD+1}, v{vD+1} {dq1}
        v_add_f32_dpp v{vD}, v{vD}, v{vD} {dq2}
        v_add_f32_dpp v{vD+1}, v{vD+1}, v{vD+1} {dq2}
        v_min_u32 v{vD}, -2, v{vD}
        v_min_u32 v{vD+1}, -2, v{vD+1}
        """)
        st_intra([f"s_mov_b64 exec, {sp(sE1)}",
                  f"global_store_dwordx2 v{pSST}, v[{vD}:{vD+1}], {sp(sB)}",
                  "s_mov_b64 exec, -1"])
    def gather_x(sxb, ssb):
        for k in range(8): e(f"v_mov_b32 v{vST+k}, 0")
        poll([f"global_load_dwordx4 {vr(vD+4*i)}, v{pXLD}, {sp(sxb)} offset:{512*i} sc1" for i in range(7)] +
             [f"s_mov_b64 exec, {sp(sE2)}",
              f"global_load_dwordx4 {vr(vST)}, v{pSLD}, {sp(ssb)} sc1",
              f"global_load_dwordx4 {vr(vST+4)}, v{pSLD}, {sp(ssb)} offset:16 sc1",
              "s_mov_b64 exec, -1"],
             list(range(vD, vD+28)) + list(range(vST, vST+8)))
        e(f"""
        v_pk_add_f32 {vr(vST,2)}, {vr(vST,2)}, {vr(vST+2,2)}
        v_pk_add_f32 {vr(vST+4,2)}, {vr(vST+4,2)}, {vr(vST+6,2)}
        v_pk_add_f32 {vr(vST,2)}, {vr(vST,2)}, {vr(vST+4,2)}
        """)
    ac0, ac1 = 60, 120
    ror8 = "row_ror:8 row_mask:0xf bank_mask:0xf"
    def ln_gemm():
        for i in range(7):
            e(f"v_mfma_f32_16x16x32_bf16 {vr(ac0)}, {vr(vW+4*i)}, {vr(vD+4*i)}, {vr(ac0) if i else '0'}")
            e(f"v_mfma_f32_16x16x32_bf16 {vr(ac1)}, {vr(vW+28+4*i)}, {vr(vD+4*i)}, {vr(ac1) if i else '0'}")
        s1, s2, t = vST, vST+1, vST+2
        e(f"""
        v_permlane32_swap_b32 v{s1}, v{s2}
        v_add_f32 v{s1}, v{s1}, v{s2}
        v_mov_b32 v{s2}, v{s1}
        v_permlane16_swap_b32 v{s1}, v{s2}
        v_add_f32 v{s1}, v{s1}, v{s2}
        v_add_f32_dpp v{s1}, v{s1}, v{s1} {ror8}
        v_mul_f32 v{s1}, s{sINV}, v{s1}
        v_mov_b32 v{s2}, v{s1}
        v_permlane32_swap_b32 v{s1}, v{s2}
        ; s1 = mean, s2 = E[x^2]
        v_fma_f32 v{s2}, -v{s1}, v{s1}, v{s2}
        v_max_f32 v{s2}, 0, v{s2}
        v_add_f32 v{s2}, s{sEPS}, v{s2}
        v_rsq_f32 v{s2}, v{s2}
        """)
        for k in range(4): e(f"v_add_f32_dpp v{ac0+k}, v{ac1+k}, v{ac0+k} {ror8}")
        for k in range(4): e(f"v_fma_f32 v{ac0+k}, -v{s1}, v{vCS+k}, v{ac0+k}")
        for k in range(4): e(f"v_mul_f32 v{ac0+k}, v{ac0+k}, v{s2}")

    def gu_frags():
        load_w(14, tGU, L_WG, 512, 64)
    def r1_mid():
        chain_consts()
        chain_consts2()
        e(f"s_lshl_b32 s{sT1}, s{sIDX}, 8")
        base(sA, sMB, f"s{sT1}")
        e(f"s_lshl_b32 s{sT1}, s{sIDX}, 3")
        base(sB, sMB, f"s{sT1}", 2*K16)
        base(sC, sMB, 2*K16)
        e(f"s_cmp_eq_u32 s{sIT}, 0\ns_cbranch_scc1 L_r1_skip")
        gu_frags()
        colsum()
        e("L_r1_skip:")
    e("L_r1_wait:")
    e("s_waitcnt vmcnt(0)")
    e("L_r1_go:")
    reduce_phase(8, sD, -4096, r1_mid, False)
    stamp(7)
    publish_x()
    e(f"s_cmp_eq_u32 s{sIT}, 0\ns_cbranch_scc0 L_p4_go")
    e("s_barrier")
    gu_frags()
    colsum()
    e("L_p4_go:")
    gather_x(sMB, sC)
    stamp(8)
    e(f"s_lshl_b32 s{sT1}, s{sIDX}, 7")
    base(sA, sMB, f"s{sT1}", 2*K16 + 4096)
    base(sB, sMB, 2*K16 + 4096)
    ln_gemm()
    e(f"""
    v_permlane32_swap_b32 v{ac0}, v{ac0+2}
    v_permlane32_swap_b32 v{ac0+1}, v{ac0+3}
    v_mul_f32 v{ac0}, s{sNL2E}, v{ac0}
    v_mul_f32 v{ac0+1}, s{sNL2E}, v{ac0+1}
    v_exp_f32 v{ac0}, v{ac0}
    v_exp_f32 v{ac0+1}, v{ac0+1}
    v_add_f32 v{ac0}, 1.0, v{ac0}
    v_add_f32 v{ac0+1}, 1.0, v{ac0+1}
    v_rcp_f32 v{ac0}, v{ac0}
    v_rcp_f32 v{ac0+1}, v{ac0+1}
    v_mul_f32 v{ac0}, v{ac0}, v{ac0+2}
    v_mul_f32 v{ac0+1}, v{ac0+1}, v{ac0+3}
    v_cvt_pk_bf16_f32 v{ac0}, v{ac0}, v{ac0+1}
    v_min_u32 v{ac0}, -2, v{ac0}
    """)
    st_intra([f"s_mov_b64 exec, {sp(sE0)}",
              f"global_store_dword v{pHST}, v{ac0}, {sp(sA)}",
              "s_mov_b64 exec, -1"])
    stamp(9)
    def p5_mid():
        load_w(7, tW32, L_WD, 1024, 128)
        e(f"""
        s_lshr_b32 s{sT1}, s{sIDX}, 1
        s_lshl_b32 s{sT1}, s{sT1}, 14
        s_and_b32 s{sT2}, s{sIDX}, 1
        s_lshl_b32 s{sT2}, s{sT2}, 12
        s_add_u32 s{sT1}, s{sT1}, s{sT2}
        s_lshl_b32 s{sT2}, s{sG}, 9
        s_add_u32 s{sT2}, s{sT2}, s{sT1}
        s_add_u32 s{sT1}, s{sT1}, s{sNEAR}
        """)
        base(sC, sIB, f"s{sT2}", W_A1)
        base(sD, sIB, f"s{sT1}", W_A1)
        e("s_waitcnt lgkmcnt(0)")
    poll([f"global_load_dwordx4 {vr(vD+4*i)}, v{pHLD}, {sp(sB)} offset:{512*i} sc1" for i in range(4)],
         range(vD, vD+16), mid=p5_mid)
    stamp(10)
    for i in range(4):
        e(f"v_mfma_f32_16x16x32_bf16 {vr(ac0)}, {vr(vW+4*i)}, {vr(vD+4*i)}, {vr(ac0) if i else '0'}")
        if i: e(f"v_mfma_f32_16x16x32_bf16 {vr(ac1)}, {vr(vW+12+4*i)}, {vr(vD+4*i)}, {vr(ac1) if i > 1 else '0'}")
    for k in range(4): e(f"v_add_f32_dpp v{ac0+k}, v{ac1+k}, v{ac0+k} {ror8}")
    for k in range(4): e(f"v_min_u32 v{ac0+k}, -2, v{ac0+k}")
    e(f"""
    s_mov_b64 exec, {sp(sE0)}
    global_store_dwordx4 v{pA1}, {vr(ac0)}, {sp(sC)} sc1
    global_store_dwordx4 v{pA1B}, {vr(ac0)}, {sp(sC)} sc1
    s_mov_b64 exec, -1
    """)
    stamp(11)
    def r2_mid():
        load_w(14, tW32, L_WQ, 1024, 128)
        e(f"s_lshl_b32 s{sT1}, s{sIDX}, 8")
        base(sA, sMB, f"s{sT1}", K16)
        e(f"s_lshl_b32 s{sT1}, s{sIDX}, 3")
        base(sB, sMB, f"s{sT1}", 2*K16 + 2048)
        colsum()
    e("s_waitcnt vmcnt(0)")
    reduce_phase(4, sD, 0, r2_mid, True)
    stamp(12)
    e(f"""
    s_cmp_eq_u32 s{sIT}, 1
    s_cbranch_scc1 L_final
    """)
    publish_x()
    e("L_p1:")
    base(sA, sMB, K16)
    base(sB, sMB, 2*K16 + 2048)
    e(f"""
    s_lshl_b32 s{sT1}, s{sG3}, 14
    s_add_u32 s{sT1}, s{sT1}, s{sPAR}
    """)
    base(sQB, sWS, f"s{sT1}", W_Q)
    gather_x(sA, sB)
    stamp(13)
    e(f"s_mov_b32 s{sT0}, 1")
    e("s_branch L_p1_core2")
    e("L_p1_core:")
    e(f"s_mov_b32 s{sT0}, 0")
    e("L_p1_core2:")
    e(f"s_lshl_b32 s{sT1}, s{sIDX}, 5")
    base(sA, sQB, f"s{sT1}")
    e(f"s_lshr_b32 s{sT1}, s{sIDX}, 2\ns_lshl_b32 s{sT1}, s{sT1}, 10")
    base(sB, sQB, f"s{sT1}")
    ln_gemm()
    e(f"""
    s_cmp_eq_u32 s{sT0}, 0
    s_cbranch_scc1 L_first_q
    v_cvt_pk_bf16_f32 v{ac0}, v{ac0}, v{ac0+1}
    v_cvt_pk_bf16_f32 v{ac0+1}, v{ac0+2}, v{ac0+3}
    v_min_u32 v{ac0}, -2, v{ac0}
    v_min_u32 v{ac0+1}, -2, v{ac0+1}
    """)
    st_intra([f"s_mov_b64 exec, {sp(sE0)}",
              f"global_store_dwordx2 v{pQST}, v[{ac0}:{ac0+1}], {sp(sA)}",
              "s_mov_b64 exec, -1"])
    stamp(14)
    def b_mid():
        dump_stamps()
        common_consts()
        e(f"s_mov_b32 s{sIT}, 1")
        base(sIB, sWS, ITSTRIDE)
        e(f"v_add_u32 v100, {L_QS}, v{pA}")
    poll([f"global_load_dwordx4 {vr(vD)}, v{pA}, {sp(sB)} sc1"], range(vD, vD+4), mid=b_mid)
    e(f"""
    ds_write_b128 v100, {vr(vD)}
    s_waitcnt lgkmcnt(0)
    s_barrier
    """)
    warm_slots(96, 97, 11)
    e("s_branch L_attn2")
    e("L_first_q:")
    e(f"""
    v_cvt_pk_bf16_f32 v{ac0}, v{ac0}, v{ac0+1}
    v_cvt_pk_bf16_f32 v{ac0+2}, v{ac0+2}, v{ac0+3}
    v_mov_b32 v{ac0+1}, s{sTAG}
    v_mov_b32 v{ac0+3}, s{sTAG}
    v_lshlrev_b32 v100, 1, v{pQST}
    s_lshl_b32 s{sT1}, s{sIDX}, 6
    """)
    base(sA, sQB, f"s{sT1}")
    e(f"""
    s_mov_b64 exec, {sp(sE0)}
    global_store_dwordx4 v100, {vr(ac0)}, {sp(sA)} sc1
    s_mov_b64 exec, -1
    s_lshr_b32 s{sT1}, s{sIDX}, 2
    s_lshl_b32 s{sT1}, s{sT1}, 11
    """)
    base(sB, sQB, f"s{sT1}")
    stamp(14)
    common_consts()
    base(sC, sWS, W_FLAG)
    e(f"""
    v_lshlrev_b32 v100, 3, v{vLANE}
    v_add_u32 v100, {L_QS}, v100
    {"s_waitcnt vmcnt(0)" if q1wait else ""}
    L_q1poll:
    global_load_dwordx4 {vr(vD)}, v{pA}, {sp(sB)} sc1
    global_load_dwordx4 {vr(vD+4)}, v{pA}, {sp(sB)} offset:1024 sc1
    global_load_dwordx4 {vr(vD+8)}, v{pA}, {sp(sC)} sc1
    global_load_dwordx4 {vr(vD+12)}, v{pA}, {sp(sC)} offset:1024 sc1
    s_add_u32 s{sSPIN}, s{sSPIN}, 1
    s_cmp_gt_u32 s{sSPIN}, {SPIN_LIMIT}
    s_cbranch_scc1 L_exit
    s_waitcnt vmcnt(0)
    """)
    for k in range(1, 16, 2): e(f"v_xor_b32 v{vD+k}, s{sTAG}, v{vD+k}")
    e(f"""
    v_or3_b32 v{vT}, v{vD+1}, v{vD+3}, v{vD+5}
    v_or3_b32 v{vT}, v{vD+7}, v{vD+9}, v{vT}
    v_or3_b32 v{vT}, v{vD+11}, v{vD+13}, v{vT}
    v_or_b32 v{vT}, v{vT}, v{vD+15}
    v_cmp_ne_u32 vcc, 0, v{vT}
    s_cbranch_vccnz L_q1poll
    v_mov_b32 v{vD+1}, v{vD+2}
    v_mov_b32 v{vD+5}, v{vD+6}
    ds_write_b64 v100, v[{vD}:{vD+1}]
    ds_write_b64 v100, v[{vD+4}:{vD+5}] offset:512
    v_lshl_or_b32 v{vD+8}, v{vD+10}, 4, v{vD+8}
    v_lshl_or_b32 v{vD+12}, v{vD+14}, 4, v{vD+12}
    s_mov_b32 s{sT1}, 0
    s_mov_b32 s{sT2}, 0
    """)
    for k in range(4):
        e(f"""
        v_readlane_b32 s{sT0}, v{vD+8}, {k}
        s_lshl_b32 s{sT3}, s{sT0}, {8*k}
        s_or_b32 s{sT1}, s{sT1}, s{sT3}
        s_and_b32 s{sT3}, s{sT0}, 7
        s_bitset1_b32 s{sT2}, s{sT3}
        s_lshr_b32 s{sT3}, s{sT0}, 4
        s_bitset1_b32 s{sT2}, s{sT3}
        """)
    e(f"""
    v_and_b32 v{vD+9}, 3, v{vLANE}
    v_lshlrev_b32 v{vD+9}, 3, v{vD+9}
    v_lshrrev_b32 v{vD+9}, v{vD+9}, s{sT1}
    v_and_b32 v{vD+9}, 0xff, v{vD+9}
    v_xor_b32 v{vD+8}, v{vD+8}, v{vD+9}
    v_xor_b32 v{vD+12}, v{vD+12}, v{vD+9}
    v_or_b32 v{vD+8}, v{vD+8}, v{vD+12}
    v_cmp_ne_u32 vcc, 0, v{vD+8}
    s_cmp_eq_u32 s{sT2}, 0xff
    s_cselect_b32 s{sT1}, 1, 0
    s_cmp_eq_u64 vcc, 0
    s_cselect_b32 s{sT1}, s{sT1}, 0
    v_mov_b32 v102, s{sT1}
    v_mov_b32 v103, {L_FL}
    ds_write_b32 v103, v102
    v_add_u32 v100, {L_KV0}, v{pA}
    s_mov_b32 s{sFAST}, s{sT1}
    """)
    set_gx()
    stamp(15)
    e("s_waitcnt lgkmcnt(0)\ns_barrier")
    e(f"s_cmp_lt_u32 s{sIDX}, 28\ns_cbranch_scc1 L_late_w\nL_late_w_back:")
    warm_slots(96, 97, 11)
    for i in range(32):
        e(f"ds_read_b128 {vr(vKF+4*i)}, v100 offset:{1024*i}")
        if i % 8 == 7: e("s_waitcnt lgkmcnt(4)")
    e("s_waitcnt lgkmcnt(0)\ns_branch L_attn2")
    e("L_gather:")
    if not mid_gather:
        throttle[0] = thr
        dma_gu(); dma_wd()
        throttle[0] = None
    e("s_branch L_bar4w")
    e("L_late_w:")
    if not wo_early: dma_wo(96, 97)
    if not mid_gather: prefetch_mlp(96, 97, 11)
    e("s_branch L_late_w_back")
    e("L_final:")
    e(f"""
    s_lshl_b32 s{sT1}, s{sG}, 2
    s_lshl_b32 s{sT2}, 15, s{sT1}
    s_mul_i32 s{sT1}, s{sG}, {896-32}
    s_lshl_b32 s{sT3}, s{sIDX}, 5
    s_add_u32 s{sT1}, s{sT1}, s{sT3}
    """)
    base(sA, sOUT, f"s{sT1}")
    e(f"""
    s_mov_b32 exec_lo, s{sT2}
    s_mov_b32 exec_hi, 0
    global_store_dwordx2 v{pXST}, v[{vD+4}:{vD+5}], {sp(sA)}
    s_mov_b64 exec, -1
    """)
    stamp(13)
    e(f"""
    s_cmp_eq_u32 s2, 0
    s_cbranch_scc0 L_noepoch
    v_mov_b32 v100, {W_EPOCH}
    v_mov_b32 v101, s{sTAG}
    s_mov_b64 exec, 1
    global_store_dword v100, v101, {sp(sWS)}
    s_mov_b64 exec, -1
    L_noepoch:
    """)
    dump_stamps()
    e("L_exit:")
    e("s_endpgm")
    for slow, instrs, back in ool:
        e(f"{slow}:")
        for i in instrs: e(i)
        e(f"s_branch {back}")

    head = []
    for line in open(REF):
        if line.startswith(';') and '@launch' not in line: head.append(line.rstrip())
        elif not line.startswith(';'): break
    src = "\n".join(head) + f"""
; @launch grid=(256,1,1) block=(512,1,1) lds={LDS_BYTES}
.amdgcn_target "amdgcn-amd-amdhsa--gfx950"
.text
.globl {KNAME}
.p2align 8
.type {KNAME},@function
{KNAME}:
""" + a.text() + f""".section .rodata,"a"
.p2align 6
.amdhsa_kernel {KNAME}
  .amdhsa_next_free_vgpr 256
  .amdhsa_next_free_sgpr 102
  .amdhsa_accum_offset 256
  .amdhsa_group_segment_fixed_size 0
  .amdhsa_kernarg_size 96
  .amdhsa_user_sgpr_count 2
  .amdhsa_user_sgpr_kernarg_segment_ptr 1
  .amdhsa_system_sgpr_workgroup_id_x 1
.end_amdhsa_kernel
"""
    return src

if __name__ == "__main__":
    out = sys.argv[1] if len(sys.argv) > 1 else "interleave_layers__sliding_block_cached__glu_gated_glu__decode.s"
    kw = dict(eval(x) for x in sys.argv[2:] if x.startswith("("))
    open(out, "w").write(gen(stamps=("stamps" in sys.argv), **kw))
```

```python
import sys
sys.path.insert(0, "dev")
from asmlib import Asm

KNAME = "interleave_layers__sliding_block_cached__glu_gated_glu__decode_kernel"
REF = "interleave_layers__sliding_block_cached__glu_gated_glu__decode.s.ref"

K16 = 16384; K8 = 8192
W_Q = 0x00000; W_O = 0x10000; W_M = 0x50000; W_D1 = 0x80000; W_A1 = 0xF0000; W_Q0 = 0x140000
ITSTRIDE = 0x400000
W_STAMP = 0x800000
W_EPOCH = 0x180000
W_FLAG = 0x160000
L_WQ = 0; L_WO = 14336; L_WG = 30720; L_WU = 37888; L_WD = 45056; L_QS = 52224; L_OC = 53248; L_ML = 69632; L_FL = 69760; L_KV0 = 70656
LDS_BYTES = 70656 + 32768
sX, sK, sV, sWQ, sWO, sWG, sWU, sWD, sOUT, sDBG, sWS = 4, 6, 8, 10, 12, 16, 18, 20, 22, 24, 26
sG, sIDX, sWAVE, sFAST, sIT, sSPIN, sXCC, sPAR, sNEAR = 28, 29, 30, 31, 32, 33, 34, 35, 36
sH, sCG, sG3 = 37, 38, 39
sIB = 40
sA, sB, sC = 42, 44, 46
sT0, sT1, sT2, sT3 = 48, 49, 50, 51
sMB = 52
sE0 = 54; sE1 = 56; sE2 = 58; sE3 = 14
sCL = 60; sINV = 61
sD = 62
sQB = 64
sEPS = 66; sNL2E = 67
sTAG = 3; sGX = 100
sSTAMP = 68
def sp(r): return f"s[{r}:{r+1}]"
def vr(r, n=4): return f"v[{r}:{r+n-1}]"
vLANE, vN, vQ, vT = 0, 1, 2, 3
vMASK = 4
vQSR, vOCW, vMLW = 8, 9, 10
vST = 4
pA, pOF, pML, pD1 = 12, 13, 14, 15
pXST, pSST, pXLD, pSLD, pHST, pHLD, pA1, pA1B, pQST, tW32, tGU = range(16, 27)
tW64 = 27
cOCR, cMLR, cOST = 16, 17, 18
vRES = 28
vD = 32
vW = 64
vONE = 120; vCS = 124
vKF = 128; vVF = 192
SPIN_LIMIT = 100000
DBG_SH = 4; DBG_OFF = 128

def gen(stamps=False, nt="nt", clr="sc1", q1wait=False, no_wdma=False, no_clear=False, wnt=None, landstamp=False, wo_early=False, wd_end=False, touch=False, lnt=None, pnt=None, warm=True, mid_gather=0, thr=1, diag=None):
    if pnt is None: pnt = nt
    if lnt is None: lnt = nt
    if wnt is None: wnt = nt
    a = Asm(); e = a.e
    ool = []
    throttle = [None]
    def stamp(idx):
        if stamps: e(f"s_memrealtime {sp(sSTAMP+2*idx)}")
    def dump_stamps():
        if not stamps or diag: return
        e("s_waitcnt lgkmcnt(0)")
        for k in range(16): e(f"v_writelane_b32 v{vT}, s{sSTAMP+2*k}, {k}")
        e(f"""
        s_lshl_b32 s{sT3}, s2, 3
        s_add_u32 s{sT3}, s{sT3}, s{sWAVE}
        s_lshl_b32 s{sT3}, s{sT3}, 1
        s_add_u32 s{sT3}, s{sT3}, s{sIT}
        s_lshl_b32 s{sT3}, s{sT3}, 6
        s_add_u32 s{sT3}, s{sT3}, {W_STAMP}
        v_lshlrev_b32 v11, 2, v{vLANE}
        v_add_u32 v11, s{sT3}, v11
        s_mov_b64 exec, 0xffff
        global_store_dword v11, v{vT}, {sp(sWS)}
        s_mov_b64 exec, -1
        """)
    def base(dst, src, *adds):
        const = sum(x for x in adds if isinstance(x, int))
        regs = [x for x in adds if not isinstance(x, int)]
        cur = src
        for r in regs + ([const] if const else []):
            e(f"s_add_u32 s{dst}, s{cur}, {r}\ns_addc_u32 s{dst+1}, s{cur+1}, 0"); cur = dst
        if cur == src: e(f"s_mov_b64 {sp(dst)}, {sp(src)}")
    def st_intra(instrs):
        slow = a.newlabel('SLOW'); back = a.newlabel('BACK')
        e(f"s_cmp_eq_u32 s{sFAST}, 0\ns_cbranch_scc1 {slow}")
        for i in instrs: e(i)
        e(f"{back}:")
        ool.append((slow, [i + " sc1" if i.startswith('global_') else i for i in instrs], back))
    def poll(loads, regs, mid=None):
        top = a.newlabel('POLL'); first = a.newlabel('PF')
        if mid:
            for l in loads: e(l)
            mid()
            e(f"s_branch {first}")
        e(f"{top}:")
        for l in loads: e(l)
        e(f"s_add_u32 s{sSPIN}, s{sSPIN}, 1\ns_cmp_gt_u32 s{sSPIN}, {SPIN_LIMIT}\ns_cbranch_scc1 L_exit")
        if mid: e(f"{first}:")
        e("s_waitcnt vmcnt(0)")
        regs = list(regs)
        e(f"v_max3_u32 v{vT}, v{regs[0]}, v{regs[1]}, v{regs[2]}")
        k = 3
        while k < len(regs):
            if k + 1 < len(regs): e(f"v_max3_u32 v{vT}, v{regs[k]}, v{regs[k+1]}, v{vT}"); k += 2
            else: e(f"v_max_u32 v{vT}, v{regs[k]}, v{vT}"); k += 1
        e(f"v_cmp_eq_u32 vcc, -1, v{vT}\ns_cbranch_vccnz {top}")
    def trfrags(dst, addr, offs):
        for i, (o0, o1) in enumerate(offs):
            e(f"ds_read_b64_tr_b16 {vr(dst+4*i,2)}, v{addr} offset:{o0}")
            e(f"ds_read_b64_tr_b16 {vr(dst+4*i+2,2)}, v{addr} offset:{o1}")
    def dma(n, ldsbase, voff, sbase, step, wnt=wnt):
        for i in range(n):
            if throttle[0] is not None: e(f"s_waitcnt vmcnt({throttle[0]})")
            e(f"s_mov_b32 m0, {ldsbase + i*1024}")
            e(f"global_load_lds_dwordx4 v{voff}, {sp(sbase)} {wnt}")
            if i + 1 < n: e(f"v_add_u32 v{voff}, {step}, v{voff}")
    def dma_wo(t0=100, t1=101):
        e(f"""
        ; wo tile: rows (2g+h)*256 + r, cols 32cg.. ; lane -> row lane/4, piece lane%4
        s_lshl_b32 s{sT1}, s{sG}, 1
        s_add_u32 s{sT1}, s{sT1}, s{sH}
        s_mul_i32 s{sT1}, s{sT1}, {256*896}
        s_lshl_b32 s{sT2}, s{sCG}, 6
        s_add_u32 s{sT1}, s{sT1}, s{sT2}
        v_lshrrev_b32 v{t0}, 2, v{vLANE}
        v_mul_u32_u24 v{t0}, 896, v{t0}
        v_and_b32 v{t1}, 3, v{vLANE}
        v_lshl_add_u32 v{t0}, v{t1}, 4, v{t0}
        v_add_u32 v{t0}, s{sT1}, v{t0}
        """)
        dma(16, L_WO, t0, sWO, 16*896)
    def dma_gu(t0=100, t1=101):
        e(f"""
        s_mul_i32 s{sT1}, s{sG}, 448
        s_lshl_b32 s{sT2}, s{sIDX}, 4
        s_add_u32 s{sT1}, s{sT1}, s{sT2}
        v_mul_u32_u24 v{t0}, 3584, v{vLANE}
        v_add_u32 v{t0}, s{sT1}, v{t0}
        v_mov_b32 v{t1}, v{t0}
        """)
        dma(7, L_WG, t0, sWG, 64*3584, lnt)
        dma(7, L_WU, t1, sWU, 64*3584, lnt)
    def dma_wd(t0=100, t1=101):
        e(f"""
        s_mul_i32 s{sT1}, s{sG}, {224*896}
        s_lshl_b32 s{sT2}, s{sIDX}, 5
        s_add_u32 s{sT1}, s{sT1}, s{sT2}
        v_lshrrev_b32 v{t0}, 1, v{vLANE}
        v_mul_u32_u24 v{t0}, 896, v{t0}
        v_and_b32 v{t1}, 1, v{vLANE}
        v_lshl_add_u32 v{t0}, v{t1}, 4, v{t0}
        v_add_u32 v{t0}, s{sT1}, v{t0}
        """)
        dma(7, L_WD, t0, sWD, 32*896, lnt)
    def prefetch_mlp(t0=96, t1=97, d=128):
        e(f"""
        v_lshrrev_b32 v{t0}, 3, v{vLANE}
        v_mul_u32_u24 v{t0}, 3584, v{t0}
        v_and_b32 v{t1}, 7, v{vLANE}
        v_min_u32 v{t1}, 6, v{t1}
        v_lshl_add_u32 v{t0}, v{t1}, 6, v{t0}
        s_mul_i32 s{sT1}, s{sG}, 448
        s_mul_i32 s{sT2}, s{sIDX}, {16*3584}
        s_add_u32 s{sT1}, s{sT1}, s{sT2}
        v_add_u32 v{t0}, s{sT1}, v{t0}
        v_add_u32 v{t1}, {8*3584}, v{t0}
        global_load_dword v{d}, v{t0}, {sp(sWG)} {pnt}
        global_load_dword v{d}, v{t1}, {sp(sWG)} {pnt}
        global_load_dword v{d}, v{t0}, {sp(sWU)} {pnt}
        global_load_dword v{d}, v{t1}, {sp(sWU)} {pnt}
        s_mul_i32 s{sT1}, s{sG}, {224*896}
        s_mul_i32 s{sT2}, s{sIDX}, 7168
        s_add_u32 s{sT1}, s{sT1}, s{sT2}
        v_lshlrev_b32 v{t0}, 6, v{vLANE}
        v_add_u32 v{t0}, s{sT1}, v{t0}
        v_min_u32 v{t1}, 47, v{vLANE}
        v_lshlrev_b32 v{t1}, 6, v{t1}
        v_add_u32 v{t1}, s{sT1}, v{t1}
        v_add_u32 v{t1}, 4096, v{t1}
        global_load_dword v{d}, v{t0}, {sp(sWD)} {pnt}
        global_load_dword v{d}, v{t1}, {sp(sWD)} {pnt}
        """)
    def warm_slots(t0, t1, d):
        if not warm: return
        e(f"""
        s_lshl_b32 s{sT1}, s{sG3}, 2
        s_lshr_b32 s{sT2}, s{sIDX}, 4
        s_add_u32 s{sT1}, s{sT1}, s{sT2}
        s_lshl_b32 s{sT1}, s{sT1}, 14
        s_and_b32 s{sT2}, s{sIDX}, 15
        s_lshl_b32 s{sT2}, s{sT2}, 9
        s_add_u32 s{sT1}, s{sT1}, s{sT2}
        s_add_u32 s{sT1}, s{sT1}, s{sPAR}
        s_add_u32 s{sT1}, s{sT1}, {W_O}
        v_bfe_u32 v{t0}, v{vLANE}, 3, 1
        v_lshlrev_b32 v{t0}, 15, v{t0}
        v_and_b32 v{t1}, 7, v{vLANE}
        v_lshl_add_u32 v{t0}, v{t1}, 6, v{t0}
        v_add_u32 v{t0}, s{sT1}, v{t0}
        s_mov_b64 exec, 0xffff
        global_load_dword v{d}, v{t0}, {sp(sIB)} sc1
        s_mul_i32 s{sT1}, s{sIDX}, 12
        v_add_u32 v{t1}, s{sT1}, v{vLANE}
        v_lshrrev_b32 v{t0}, 7, v{t1}
        v_lshlrev_b32 v{t0}, 14, v{t0}
        v_and_b32 v{t1}, 127, v{t1}
        v_lshl_add_u32 v{t0}, v{t1}, 6, v{t0}
        s_mul_i32 s{sT1}, s{sG3}, {3*K16}
        s_add_u32 s{sT1}, s{sT1}, s{sPAR}
        s_add_u32 s{sT1}, s{sT1}, {W_M}
        v_add_u32 v{t0}, s{sT1}, v{t0}
        s_mov_b64 exec, 0xfff
        global_load_dword v{d}, v{t0}, {sp(sIB)} sc1
        s_lshl_b32 s{sT1}, s{sG3}, 14
        s_add_u32 s{sT1}, s{sT1}, s{sPAR}
        s_lshl_b32 s{sT2}, s{sIDX}, 8
        s_add_u32 s{sT1}, s{sT1}, s{sT2}
        v_lshlrev_b32 v{t0}, 6, v{vLANE}
        v_add_u32 v{t0}, s{sT1}, v{t0}
        s_mov_b64 exec, 0xf
        global_load_dword v{d}, v{t0}, {sp(sIB)} sc1
        s_mov_b64 exec, -1
        """)
    def set_gx():
        e(f"""
        s_cmp_eq_u32 s{sFAST}, 0
        s_cselect_b32 s{sG3}, s{sG}, s{sXCC}
        s_lshr_b32 s{sPAR}, s{sG3}, 2
        s_lshl_b32 s{sPAR}, s{sPAR}, 13
        s_and_b32 s{sG3}, s{sG3}, 3
        """)
    def kvaddr():
        e(f"""
        s_lshr_b32 s{sT0}, s{sIDX}, 2
        s_lshl_b32 s{sT0}, s{sT0}, 24
        s_lshl_b32 s{sT1}, s{sG}, 21
        s_add_u32 s{sT0}, s{sT0}, s{sT1}
        s_and_b32 s{sT1}, s{sIDX}, 3
        s_lshl_b32 s{sT1}, s{sT1}, 17
        s_add_u32 s{sT0}, s{sT0}, s{sT1}
        s_lshl_b32 s{sT1}, s{sWAVE}, 14
        s_add_u32 s{sT0}, s{sT0}, s{sT1}
        s_add_u32 s{sT0}, s{sT0}, {3072*512}
        ; K lane offset: key = 4*(n%4) + n/4 ; + quad*16
        v_and_b32 v96, 3, v{vN}
        v_lshlrev_b32 v96, 11, v96
        v_lshrrev_b32 v97, 2, v{vN}
        v_lshl_add_u32 v96, v97, 9, v96
        v_lshl_add_u32 v96, v{vQ}, 4, v96
        v_add_u32 v96, s{sT0}, v96            ; K tile 0
        v_add_u32 v97, {K8}, v96              ; K tile 1
        v_lshlrev_b32 v98, 4, v{vN}
        v_lshl_add_u32 v98, v{vQ}, 9, v98
        v_add_u32 v98, s{sT0}, v98
        v_add_u32 v98, 4096, v98
        v_add_u32 v99, {K8}, v98
        """)
    def kvloads():
        for t in range(2):
            for i in range(8):
                e(f"global_load_dwordx4 {vr(vKF+32*t+4*i)}, v{96+t}, {sp(sK)} offset:{64*i} {nt}")
        for t in range(2):
            for r in range(4):
                for c in range(2):
                    e(f"global_load_dwordx4 {vr(vVF+32*t+8*r+4*c)}, v{98+t}, {sp(sV)} offset:{2048*r+256*c-4096} {nt}")
    def common_consts():
        e(f"""
        ; masks: position j = n%8 -> reg j/2, half j%2
        v_and_b32 v100, 1, v{vN}
        v_lshlrev_b32 v100, 4, v100
        v_mov_b32 v101, 0xffff
        v_lshlrev_b32 v101, v100, v101
        v_bfe_u32 v100, v{vN}, 1, 2
        """)
        for r in range(4):
            e(f"v_cmp_eq_u32 vcc, {r}, v100\nv_cndmask_b32 v{vMASK+r}, 0, v101, vcc")
        e(f"""
        v_lshrrev_b32 v100, 3, v{vN}
        v_lshlrev_b32 v{vQSR}, 9, v100
        v_lshl_add_u32 v{vQSR}, v{vQ}, 4, v{vQSR}
        v_add_u32 v{vQSR}, {L_QS}, v{vQSR}
        ; OC write: wave*2048 + (quad/2)*1024 + n*32 + (quad%2)*16   (+512 for c=1)
        v_lshrrev_b32 v101, 1, v{vQ}
        v_lshlrev_b32 v{vOCW}, 10, v101
        v_lshl_add_u32 v{vOCW}, v{vN}, 5, v{vOCW}
        v_and_b32 v101, 1, v{vQ}
        v_lshl_add_u32 v{vOCW}, v101, 4, v{vOCW}
        s_lshl_b32 s{sT1}, s{sWAVE}, 11
        s_add_u32 s{sT1}, s{sT1}, {L_OC}
        v_add_u32 v{vOCW}, s{sT1}, v{vOCW}
        s_lshl_b32 s{sT1}, s{sWAVE}, 3
        s_add_u32 s{sT1}, s{sT1}, {L_ML}
        v_lshlrev_b32 v{vMLW}, 6, v100
        v_add_u32 v{vMLW}, s{sT1}, v{vMLW}
        """)
    def p3_consts():
        e(f"""
        v_lshlrev_b32 v{pA}, 4, v{vLANE}
        v_lshlrev_b32 v{pOF}, 9, v{vN}
        v_lshl_add_u32 v{pOF}, v{vQ}, 4, v{pOF}
        v_lshlrev_b32 v{pML}, 3, v{vN}
        v_and_b32 v100, 1, v{vN}
        v_lshlrev_b32 v{pD1}, 14, v100
        v_bfe_u32 v100, v{vN}, 1, 1
        v_lshl_add_u32 v{pD1}, v100, 13, v{pD1}
        v_lshrrev_b32 v100, 2, v{vN}
        v_lshl_add_u32 v{pD1}, v100, 6, v{pD1}
        v_lshl_add_u32 v{pD1}, v{vQ}, 4, v{pD1}
        v_lshl_add_u32 v100, v{vQ}, 3, v100      ; 8q + r
        v_and_b32 v101, 3, v{vN}
        v_lshlrev_b32 v{tW64}, 6, v100
        v_lshl_add_u32 v{tW64}, v101, 3, v{tW64}
        s_mov_b32 s{sE3}, 0xaaaaaaaa
        s_mov_b32 s{sE3+1}, 0xaaaaaaaa
        """)
    def chain_consts():
        b, kh, q2, q1, t0, t1 = 4, 5, 6, 7, 8, 9
        e(f"""
        v_lshrrev_b32 v{t0}, 2, v{vN}
        v_lshl_add_u32 v{t0}, v{vQ}, 3, v{t0}    ; 8q + r
        v_and_b32 v{t1}, 3, v{vN}
        v_lshlrev_b32 v{tW32}, 5, v{t0}
        v_lshl_add_u32 v{tW32}, v{t1}, 3, v{tW32}
        v_lshlrev_b32 v{tGU}, 4, v{t0}
        v_and_b32 v{t0}, 1, v{t1}
        v_lshl_add_u32 v{tGU}, v{t0}, 3, v{tGU}
        v_lshrrev_b32 v{t0}, 1, v{t1}
        v_mul_u32_u24 v{t0}, 7168, v{t0}
        v_add_u32 v{tGU}, v{t0}, v{tGU}
        """)
    def chain_consts2():
        b, kh, q2, q1, t0, t1 = 4, 5, 6, 7, 8, 9
        e(f"""
        v_and_b32 v{b}, 7, v{vN}
        v_lshrrev_b32 v{kh}, 3, v{vN}
        v_lshrrev_b32 v{q2}, 1, v{vQ}
        v_and_b32 v{q1}, 1, v{vQ}
        v_and_b32 v{pXST}, 31, v{vLANE}
        v_lshlrev_b32 v{pXST}, 3, v{pXST}
        v_bfe_u32 v{pSST}, v{vLANE}, 2, 3
        v_lshlrev_b32 v{pSST}, 8, v{pSST}
        v_mul_u32_u24 v{pXLD}, 14, v{kh}
        v_add_u32 v{pXLD}, v{pXLD}, v{q2}
        v_lshlrev_b32 v{pXLD}, 8, v{pXLD}
        v_lshl_add_u32 v{pXLD}, v{b}, 5, v{pXLD}
        v_lshl_add_u32 v{pXLD}, v{q1}, 4, v{pXLD}
        v_lshlrev_b32 v{pSLD}, 8, v{b}
        v_lshrrev_b32 v{t0}, 3, v{vLANE}
        v_lshl_add_u32 v{pSLD}, v{t0}, 5, v{pSLD}
        v_lshlrev_b32 v{pHST}, 4, v{b}
        v_lshl_add_u32 v{pHST}, v{q1}, 3, v{pHST}
        v_lshl_add_u32 v{pHST}, v{q2}, 2, v{pHST}
        v_mul_u32_u24 v{pHLD}, 12, v{kh}
        v_add_u32 v{pHLD}, v{pHLD}, v{vQ}
        v_lshlrev_b32 v{pHLD}, 7, v{pHLD}
        v_lshl_add_u32 v{pHLD}, v{b}, 4, v{pHLD}
        v_lshlrev_b32 v{pA1}, 6, v{b}
        v_lshl_add_u32 v{pA1}, v{vQ}, 4, v{pA1}
        v_add_u32 v{pA1B}, {K8}, v{pA1}
        v_lshlrev_b32 v{pQST}, 10, v{b}
        v_lshl_add_u32 v{pQST}, v{vQ}, 3, v{pQST}
        """)
    def load_w(n, addr, ldsbase, istep, ustep):
        trfrags(vW, addr, [(ldsbase + i*istep, ldsbase + i*istep + ustep) for i in range(n)])
    def colsum():
        for k in range(4): e(f"v_mov_b32 v{vONE+k}, 0x3f803f80")
        e("s_waitcnt lgkmcnt(0)")
        for i in range(14):
            e(f"v_mfma_f32_16x16x32_bf16 {vr(vCS)}, {vr(vW+4*i)}, {vr(vONE)}, {vr(vCS) if i else '0'}")

    e(f"""
    s_cmp_ge_u32 s2, 256
    s_cbranch_scc1 L_exit
    s_load_dwordx16 s[4:19], s[0:1], 0
    s_load_dwordx8 s[20:27], s[0:1], 64
    v_readfirstlane_b32 s{sWAVE}, v0
    s_and_b32 s{sG}, s2, 7
    s_lshr_b32 s{sIDX}, s2, 3
    s_lshr_b32 s{sWAVE}, s{sWAVE}, 6
    s_mov_b32 s{sIT}, 0
    s_mov_b32 s{sSPIN}, 0
    v_and_b32 v{vN}, 15, v0
    v_and_b32 v{vLANE}, 63, v0
    v_lshrrev_b32 v{vQ}, 4, v{vLANE}
    s_cmp_ge_u32 s{sIDX}, 14
    s_cselect_b32 s{sH}, 1, 0
    s_mul_i32 s{sT1}, s{sH}, 14
    s_sub_u32 s{sCG}, s{sIDX}, s{sT1}
    s_mov_b32 s{sCL}, 0x3db8aa3b          ; log2(e)/16
    """)
    if stamps:
        for k in range(32): e(f"s_mov_b32 s{sSTAMP+k}, 0")
    stamp(0)
    e(f"""
    s_cmp_eq_u32 s{sWAVE}, 0
    s_cbranch_scc1 L_chain_pro
    """)
    e(f"""
    s_getreg_b32 s{sXCC}, hwreg(HW_REG_XCC_ID, 0, 4)
    s_and_b32 s{sXCC}, s{sXCC}, 7
    s_cmp_eq_u32 s{sWAVE}, 7
    s_cbranch_scc0 L_pre_done
    s_setprio 3
    s_mul_i32 s{sT1}, s2, 5120
    s_add_u32 s{sT1}, s{sT1}, 2048
    v_lshlrev_b32 v108, 4, v{vLANE}
    v_add_u32 v108, s{sT1}, v108
    v_mov_b32 v112, -1
    v_mov_b32 v113, -1
    v_mov_b32 v114, -1
    v_mov_b32 v115, -1
    s_waitcnt lgkmcnt(0)
    """)
    for r in (108,):
        for i in range(0 if no_clear else 5): e(f"global_store_dwordx4 v{r}, v[112:115], {sp(sWS)} offset:{1024*i-2048} {clr}")
    base(sA, sWS, W_EPOCH)
    e(f"s_load_dword s{sTAG}, {sp(sA)}, 0")
    e("L_pre_done:")
    kvaddr()
    e(f"""
    s_waitcnt lgkmcnt(0)
    s_barrier
    s_cmp_lt_u32 s{sWAVE}, 4
    s_cbranch_scc1 L_not_w7
    s_cmp_eq_u32 s{sWAVE}, 7
    s_cbranch_scc0 L_kv0
    s_mul_i32 s{sTAG}, s{sTAG}, 0x9e3779b1
    s_add_u32 s{sTAG}, s{sTAG}, 0x7f4a7c15
    v_mov_b32 v102, s{sXCC}
    v_mov_b32 v103, s{sTAG}
    s_lshl_b32 s{sT1}, s2, 3
    s_add_u32 s{sT1}, s{sT1}, {W_FLAG}
    v_mov_b32 v104, s{sT1}
    s_waitcnt vmcnt(0)
    s_mov_b64 exec, 1
    global_store_dwordx2 v104, v[102:103], {sp(sWS)} sc1
    s_mov_b64 exec, -1
    s_setprio 0
    """)
    stamp(1)
    e(f"""
    L_kv0:
    s_lshl_b32 s{sT1}, s{sWAVE}, 14
    s_and_b32 s{sT2}, s{sWAVE}, 1
    s_lshl_b32 s{sT2}, s{sT2}, 13
    s_sub_u32 s{sT1}, s{sT2}, s{sT1}
    s_and_b32 s{sT2}, s{sWAVE}, 3
    s_lshl_b32 s{sT2}, s{sT2}, 13
    s_add_u32 s{sT2}, s{sT2}, {L_KV0}
    s_cmp_ge_u32 s{sWAVE}, 6
    s_cbranch_scc1 L_kv0_v
    v_add_u32 v100, s{sT1}, v96
    """)
    for i in range(8):
        e(f"s_add_u32 m0, s{sT2}, {1024*i}")
        e(f"global_load_lds_dwordx4 v100, {sp(sK)} {nt}")
        if i < 7: e(f"v_add_u32 v100, 64, v100")
    e(f"""
    s_branch L_kvload
    L_kv0_v:
    s_sub_u32 s{sT1}, s{sT1}, 4096
    v_add_u32 v100, s{sT1}, v98
    """)
    for i in range(8):
        e(f"s_add_u32 m0, s{sT2}, {1024*i}")
        e(f"global_load_lds_dwordx4 v100, {sp(sV)} {nt}")
        if i < 7: e(f"v_add_u32 v100, {256 if i % 2 == 0 else 2048-256}, v100")
    e(f"""
    s_branch L_kvload
    L_not_w7:
    """)
    if wo_early:
        e(f"""
        s_cmp_ge_u32 s{sIDX}, 28
        s_cbranch_scc1 L_kvload
        s_cmp_eq_u32 s{sWAVE}, 1
        s_cbranch_scc0 L_kvload
        """)
        dma_wo()
    e("L_kvload:")
    stamp(7)
    kvloads()
    stamp(8)
    if landstamp:
        e("s_waitcnt vmcnt(0)")
        stamp(9)
    common_consts()
    p3_consts()
    e(f"""
    s_mov_b64 {sp(sIB)}, {sp(sWS)}
    s_and_b32 s{sT2}, s{sWAVE}, 3
    s_lshl_b32 s{sT1}, s{sT2}, 9
    s_add_u32 s{sT1}, s{sT1}, {L_OC}
    v_lshlrev_b32 v{cOCR}, 3, v{vLANE}
    v_add_u32 v{cOCR}, s{sT1}, v{cOCR}
    s_lshr_b32 s{sT1}, s{sT2}, 1
    s_lshl_b32 s{sT1}, s{sT1}, 6
    s_add_u32 s{sT1}, s{sT1}, {L_ML}
    v_mov_b32 v{cMLR}, s{sT1}
    v_lshlrev_b32 v{cOST}, 2, v{vLANE}
    v_mov_b32 v{pSLD}, 0
    v_mov_b32 v{pQST}, 0
    s_waitcnt vmcnt(32)
    """)
    if mid_gather:
        e(f"""
        s_cmp_eq_u32 s{sWAVE}, {mid_gather}
        s_cbranch_scc0 L_attn_first
        s_cmp_lt_u32 s{sIDX}, 28
        s_cbranch_scc0 L_attn_first
        s_waitcnt vmcnt(0)
        """)
        stamp(10)
        dma_gu(); dma_wd()
        e("s_waitcnt vmcnt(0)")
        stamp(11)
    e("s_branch L_attn_first")

    e("L_chain_pro:")
    e(f"""
    s_setprio 3
    v_and_b32 v100, 7, v{vN}
    v_lshrrev_b32 v101, 3, v{vN}
    v_mul_u32_u24 v102, 896, v100
    v_mul_u32_u24 v103, 448, v101
    v_add_u32 v102, v102, v103
    v_lshl_add_u32 v102, v{vQ}, 4, v102
    s_lshl_b32 s{sT1}, s{sG}, 10
    s_lshl_b32 s{sT2}, s{sIDX}, 5
    s_add_u32 s{sT1}, s{sT1}, s{sT2}
    v_lshrrev_b32 v106, 1, v{vLANE}
    v_lshlrev_b32 v106, 13, v106
    v_and_b32 v107, 1, v{vLANE}
    v_lshl_add_u32 v106, v107, 4, v106
    v_add_u32 v106, s{sT1}, v106
    ; residual slice: b=(l%32)/4, cq=l%4 : b*896 + j*32 + cq*8   (j clamped to 27)
    s_min_u32 s{sT1}, s{sIDX}, 27
    s_lshl_b32 s{sT1}, s{sT1}, 5
    v_bfe_u32 v103, v{vLANE}, 2, 3
    v_mul_u32_u24 v104, 896, v103
    v_and_b32 v105, 3, v{vLANE}
    v_lshl_add_u32 v104, v105, 3, v104
    v_add_u32 v104, s{sT1}, v104
    s_waitcnt lgkmcnt(0)
    """)
    for i in range(7): e(f"global_load_dwordx4 {vr(vD+4*i)}, v102, {sp(sX)} offset:{64*i}")
    e(f"global_load_dwordx2 v[60:61], v104, {sp(sX)}")
    dma(14, L_WQ, 106, sWQ, 32*8192)
    if mid_gather:
        e(f"s_cmp_lt_u32 s{sIDX}, 28\ns_cbranch_scc0 L_nopf")
        prefetch_mlp(108, 109, 128)
        e("L_nopf:")
    e("s_barrier")
    base(sA, sWS, W_EPOCH)
    e(f"s_load_dword s{sTAG}, {sp(sA)}, 0")
    if touch:
        e(f"v_mov_b32 v110, 0\nv_mov_b32 v111, {2<<20}\ns_mov_b64 exec, 1")
        for sb in (sWG, sWU, sWD, sWO, sOUT):
            e(f"global_load_dword v128, v110, {sp(sb)} nt")
        e(f"global_load_dword v128, v111, {sp(sWO)} nt")
        e("s_mov_b64 exec, -1")
    p3_consts()
    chain_consts(); chain_consts2()
    e(f"""
    s_mov_b32 s{sE0}, 0x00ff00ff
    s_mov_b32 s{sE0+1}, 0x00ff00ff          ; lanes n<8
    s_mov_b32 s{sE1}, 0x11111111
    s_mov_b32 s{sE1+1}, 0                   ; l<32, l%4==0
    s_mov_b32 s{sE2}, -1
    s_mov_b32 s{sE2+1}, 0x00ffffff          ; lanes < 56
    s_getreg_b32 s{sXCC}, hwreg(HW_REG_XCC_ID, 0, 4)
    s_and_b32 s{sXCC}, s{sXCC}, 7
    s_lshr_b32 s{sNEAR}, s{sXCC}, 2
    s_lshl_b32 s{sNEAR}, s{sNEAR}, 13
    s_mov_b32 s{sFAST}, 0
    s_mov_b32 s{sINV}, 0x3b124925           ; 1/448
    s_mov_b32 s{sEPS}, 0x3727c5ac           ; 1e-5
    s_mov_b32 s{sNL2E}, 0xbfb8aa3b          ; -log2(e)
    s_mov_b64 {sp(sIB)}, {sp(sWS)}
    s_lshl_b32 s{sT1}, s{sG}, 14
    """)
    base(sQB, sWS, f"s{sT1}", W_Q0)
    vS1, vS2 = vST, vST+1
    e(f"""
    v_mov_b32 v{vONE}, 0x3f803f80
    v_mov_b32 v{vS1}, 0
    v_mov_b32 v{vS2}, 0
    s_waitcnt vmcnt({14}) lgkmcnt(0)
    s_mul_i32 s{sTAG}, s{sTAG}, 0x9e3779b1
    s_add_u32 s{sTAG}, s{sTAG}, 0x7f4a7c15
    """)
    for i in range(28):
        e(f"v_dot2c_f32_bf16 v{vS1}, v{vD+i}, v{vONE}\nv_dot2c_f32_bf16 v{vS2}, v{vD+i}, v{vD+i}")
    e(f"""
    v_lshlrev_b32 v{vRES}, 16, v60
    v_and_b32 v{vRES+1}, 0xffff0000, v60
    v_lshlrev_b32 v{vRES+2}, 16, v61
    v_and_b32 v{vRES+3}, 0xffff0000, v61
    s_waitcnt vmcnt(0)
    """)
    stamp(1)
    load_w(14, tW32, L_WQ, 1024, 128)
    colsum()
    e("s_branch L_p1_core")

    vQF = vD; vS = 64; vAF = 72; vAC = 80; vM = 88; vL = 89; vX0 = 90; vX1 = 91
    def p2(waits):
        stamp(2)
        for i in range(8): e(f"ds_read_b128 {vr(vQF+4*i)}, v{vQSR} offset:{64*i}")
        e(f"v_mov_b32 v{vX0}, {L_FL}\nds_read_b32 v{vX1}, v{vX0}")
        for t in range(2):
            (e(f"s_waitcnt vmcnt({24-8*t})") if waits else None)
            for i in range(8):
                if t == 0: e(f"s_waitcnt lgkmcnt({8-i})")
                e(f"v_mfma_f32_16x16x32_bf16 {vr(vS+4*t)}, {vr(vKF+32*t+4*i)}, {vr(vQF+4*i)}, {vr(vS+4*t) if i else '0'}")
        e(f"""
        s_waitcnt lgkmcnt(0)
        v_readfirstlane_b32 s{sFAST}, v{vX1}
        s_cmp_eq_u32 s{sFAST}, 0
        s_cselect_b32 s{sG3}, s{sG}, s{sXCC}
        s_lshr_b32 s{sPAR}, s{sG3}, 2
        s_lshl_b32 s{sPAR}, s{sPAR}, 13
        s_and_b32 s{sG3}, s{sG3}, 3
        """)
        e(f"""
        v_max3_f32 v{vM}, v{vS}, v{vS+1}, v{vS+2}
        v_max3_f32 v{vM}, v{vS+3}, v{vS+4}, v{vM}
        v_max3_f32 v{vM}, v{vS+5}, v{vS+6}, v{vM}
        v_max_f32 v{vM}, v{vS+7}, v{vM}
        v_mov_b32 v{vX0}, v{vM}
        v_permlane32_swap_b32 v{vM}, v{vX0}
        v_max_f32 v{vM}, v{vM}, v{vX0}
        v_mov_b32 v{vX0}, v{vM}
        v_permlane16_swap_b32 v{vM}, v{vX0}
        v_max_f32 v{vM}, v{vM}, v{vX0}
        v_mul_f32 v{vM}, s{sCL}, v{vM}
        """)
        for k in range(8): e(f"v_fma_f32 v{vS+k}, v{vS+k}, s{sCL}, -v{vM}")
        for k in range(8): e(f"v_exp_f32 v{vS+k}, v{vS+k}")
        e(f"v_add_f32 v{vL}, v{vS}, v{vS+1}")
        for k in range(2, 8): e(f"v_add_f32 v{vL}, v{vL}, v{vS+k}")
        for k in range(8): e(f"v_cvt_pk_bf16_f32 v{vS+k}, v{vS+k}, v{vS+k}")
        for k in range(8):
            af = vAF + 4*(k % 2)
            for r in range(4): e(f"v_and_b32 v{af+r}, v{vS+k}, v{vMASK+r}")
            (e(f"s_waitcnt vmcnt({14-2*k})") if waits else None)
            for c in range(2):
                e(f"v_mfma_f32_16x16x32_bf16 {vr(vAC+4*c)}, {vr(af)}, {vr(vVF+8*k+4*c)}, {vr(vAC+4*c) if k else '0'}")
        e(f"""
        v_mov_b32 v{vX0}, v{vL}
        v_permlane32_swap_b32 v{vL}, v{vX0}
        v_add_f32 v{vL}, v{vL}, v{vX0}
        v_mov_b32 v{vX0}, v{vL}
        v_permlane16_swap_b32 v{vL}, v{vX0}
        v_add_f32 v{vL}, v{vL}, v{vX0}
        s_mov_b64 exec, 0x101
        ds_write_b64 v{vMLW}, v[{vM}:{vL}]
        s_mov_b64 exec, -1
        ds_write_b128 v{vOCW}, {vr(vAC)}
        ds_write_b128 v{vOCW}, {vr(vAC+4)} offset:512
        s_mul_i32 s{sT1}, s{sG3}, {3*K16}
        s_add_u32 s{sT1}, s{sT1}, s{sPAR}
        """)

    e("L_attn_first:")
    e("s_barrier")
    p2(True)
    e("s_branch L_attn_tail")
    e("L_attn:")
    e("s_barrier")
    e("L_attn2:")
    p2(False)
    e("L_attn_tail:")
    base(sMB, sIB, f"s{sT1}", W_M)
    stamp(3)
    e(f"""
    s_waitcnt lgkmcnt(0)
    s_barrier
    s_cmp_lt_u32 s{sWAVE}, 2
    s_cbranch_scc1 L_p3
    s_cmp_lt_u32 s{sWAVE}, 4
    s_cbranch_scc1 L_bar3
    """)
    for k in range(4): e(f"ds_read_b128 {vr(vD+4*k)}, v{cMLR} offset:{16*k}")
    for w in range(8): e(f"ds_read_b64 {vr(vD+16+2*w,2)}, v{cOCR} offset:{2048*w}")
    e(f"""
    s_bfe_u32 s{sT1}, s{sWAVE}, 0x10001
    s_lshl_b32 s{sT2}, s{sG3}, 1
    s_add_u32 s{sT2}, s{sT2}, s{sT1}
    s_lshl_b32 s{sT2}, s{sT2}, 1
    s_lshr_b32 s{sT3}, s{sIDX}, 4
    s_add_u32 s{sT2}, s{sT2}, s{sT3}
    s_lshl_b32 s{sT2}, s{sT2}, 14
    s_add_u32 s{sT2}, s{sT2}, s{sPAR}
    s_and_b32 s{sT3}, s{sIDX}, 15
    s_lshl_b32 s{sT3}, s{sT3}, 9
    s_add_u32 s{sT2}, s{sT2}, s{sT3}
    s_and_b32 s{sT3}, s{sWAVE}, 1
    s_lshl_b32 s{sT3}, s{sT3}, 8
    s_add_u32 s{sT2}, s{sT2}, s{sT3}
    """)
    base(sA, sIB, f"s{sT2}", W_O)
    e(f"""
    s_lshl_b32 s{sT1}, s{sT1}, 8
    s_lshl_b32 s{sT3}, s{sIDX}, 3
    s_add_u32 s{sT1}, s{sT1}, s{sT3}
    """)
    base(sB, sMB, f"s{sT1}", 7168)
    mm = [vD + 2*w for w in range(8)]; ll = [vD + 2*w + 1 for w in range(8)]
    e(f"""
    s_waitcnt lgkmcnt(8)
    v_max3_f32 v{vM}, v{mm[0]}, v{mm[1]}, v{mm[2]}
    v_max3_f32 v{vM}, v{mm[3]}, v{mm[4]}, v{vM}
    v_max3_f32 v{vM}, v{mm[5]}, v{mm[6]}, v{vM}
    v_max_f32 v{vM}, v{mm[7]}, v{vM}
    """)
    for w in range(8): e(f"v_sub_f32 v{mm[w]}, v{mm[w]}, v{vM}")
    for w in range(8): e(f"v_exp_f32 v{mm[w]}, v{mm[w]}")
    e(f"v_mul_f32 v{vL}, v{mm[0]}, v{ll[0]}")
    for w in range(1, 8): e(f"v_fmac_f32 v{vL}, v{mm[w]}, v{ll[w]}")
    e(f"v_rcp_f32 v{vX0}, v{vL}")
    e("s_waitcnt lgkmcnt(0)")
    o0, o1 = 92, 93
    e(f"v_mul_f32 v{o0}, v{mm[0]}, v{vD+16}\nv_mul_f32 v{o1}, v{mm[0]}, v{vD+17}")
    for w in range(1, 8):
        e(f"v_fmac_f32 v{o0}, v{mm[w]}, v{vD+16+2*w}\nv_fmac_f32 v{o1}, v{mm[w]}, v{vD+17+2*w}")
    e(f"""
    v_mul_f32 v{o0}, v{o0}, v{vX0}
    v_mul_f32 v{o1}, v{o1}, v{vX0}
    v_cvt_pk_bf16_f32 v{o0}, v{o0}, v{o1}
    v_min_u32 v{o0}, -2, v{o0}
    v_min_u32 v{vM}, -2, v{vM}
    v_min_u32 v{vL}, -2, v{vL}
    v_mov_b32 v{vX1}, 0
    """)
    st_intra([f"global_store_dword v{cOST}, v{o0}, {sp(sA)}",
              "s_mov_b64 exec, 1",
              f"global_store_dwordx2 v{vX1}, v[{vM}:{vL}], {sp(sB)}",
              "s_mov_b64 exec, -1"])
    stamp(4)
    e("L_bar3:")
    e("s_barrier")
    e("L_next:")
    dump_stamps()
    e(f"""
    s_cmp_eq_u32 s{sIT}, 1
    s_cbranch_scc1 L_exit
    s_cmp_lt_u32 s{sIDX}, 28
    s_cbranch_scc0 L_bar4
    s_cmp_eq_u32 s{sWAVE}, 2
    s_cbranch_scc1 L_gather
    s_cmp_eq_u32 s{sWAVE}, 3
    s_cbranch_scc0 L_bar4
    s_mul_i32 s{sT1}, s2, 6144
    s_add_u32 s{sT1}, s{sT1}, {ITSTRIDE + 3072}
    v_add_u32 v108, s{sT1}, v{pA}
    v_mov_b32 v112, -1
    v_mov_b32 v113, -1
    v_mov_b32 v114, -1
    v_mov_b32 v115, -1
    """)
    for i in range(0 if no_clear else 6): e(f"global_store_dwordx4 v108, v[112:115], {sp(sWS)} offset:{1024*i-3072} sc1")
    e(f"""
    L_bar4w:
    s_waitcnt vmcnt(0)
    L_bar4:
    s_barrier
    s_mov_b32 s{sIT}, 1
    """)
    base(sIB, sWS, ITSTRIDE)
    e("s_branch L_attn")

    e("L_p3:")
    e(f"""
    s_cmp_lt_u32 s{sIDX}, 28
    s_cbranch_scc1 L_p3_go
    s_barrier
    s_cmp_eq_u32 s{sWAVE}, 1
    s_cbranch_scc1 L_next
    s_cmp_eq_u32 s{sIT}, 1
    s_cbranch_scc1 L_exit
    s_barrier
    """)
    load_w(14, tW32, L_WQ, 1024, 128)
    colsum()
    e("s_branch L_p1")
    e("L_p3_go:")
    def wo_frags():
        trfrags(vW, tW64, [(L_WO + i*2048 + ct*32, L_WO + i*2048 + 256 + ct*32) for ct in range(2) for i in range(8)])
    e(f"""
    s_mov_b32 s{sT3}, s{sWAVE}               ; rt
    s_lshl_b32 s{sT2}, s{sG3}, 1
    s_add_u32 s{sT2}, s{sT2}, s{sH}
    s_lshl_b32 s{sT2}, s{sT2}, 1
    s_add_u32 s{sT2}, s{sT2}, s{sT3}
    s_lshl_b32 s{sT2}, s{sT2}, 14
    s_add_u32 s{sT2}, s{sT2}, s{sPAR}
    """)
    base(sA, sIB, f"s{sT2}", W_O)
    e(f"""
    s_lshl_b32 s{sT1}, s{sH}, 8
    s_lshl_b32 s{sT2}, s{sT3}, 7
    s_add_u32 s{sT1}, s{sT1}, s{sT2}
    """)
    base(sB, sMB, f"s{sT1}", 7168)
    e(f"""
    s_lshl_b32 s{sT1}, s{sCG}, 15
    s_lshl_b32 s{sT2}, s{sG}, 1
    s_add_u32 s{sT2}, s{sT2}, s{sH}
    s_lshl_b32 s{sT2}, s{sT2}, 9
    s_add_u32 s{sT1}, s{sT1}, s{sT2}
    s_lshl_b32 s{sT2}, s{sT3}, 8
    s_add_u32 s{sT1}, s{sT1}, s{sT2}
    """)
    base(sC, sIB, f"s{sT1}", W_D1)
    e(f"""
    s_lshl_b32 s{sT1}, s{sIDX}, 14
    s_add_u32 s{sT1}, s{sT1}, s{sNEAR}
    """)
    base(sD, sIB, f"s{sT1}", W_D1 + 4096)
    e(f"s_waitcnt vmcnt({(0 if mid_gather else 6) + (3 if warm else 0)})")
    e("s_barrier")
    stamp(4)
    pac = 16; pml = 24; ptm = 26
    def c_mid():
        wo_frags()
        e("s_waitcnt lgkmcnt(0)")
    poll([f"global_load_dwordx2 v[{pml}:{pml+1}], v{pML}, {sp(sB)} sc1"] +
         [f"global_load_dwordx4 {vr(vD+4*i)}, v{pOF}, {sp(sA)} offset:{64*i} sc1" for i in range(8)],
         [pml, pml+1] + list(range(vD, vD+32)), mid=c_mid)
    stamp(5)
    for i in range(8):
        for ct in range(2):
            e(f"v_mfma_f32_16x16x32_bf16 {vr(pac+4*ct)}, {vr(vW+32*ct+4*i)}, {vr(vD+4*i)}, {vr(pac+4*ct) if i else '0'}")
    dq1 = "quad_perm:[1,0,3,2] row_mask:0xf bank_mask:0xf"; dq2 = "quad_perm:[2,3,0,1] row_mask:0xf bank_mask:0xf"
    e(f"""
    v_max_f32_dpp v{ptm}, v{pml}, v{pml} {dq1}
    v_max_f32_dpp v{ptm}, v{ptm}, v{ptm} {dq2}
    v_sub_f32 v{pml}, v{pml}, v{ptm}
    v_exp_f32 v{pml}, v{pml}
    v_mul_f32 v{pml}, v{pml}, v{pml+1}
    v_add_f32_dpp v{ptm}, v{pml}, v{pml} {dq1}
    v_add_f32_dpp v{ptm}, v{ptm}, v{ptm} {dq2}
    v_rcp_f32 v{ptm}, v{ptm}
    v_mul_f32 v{pml}, v{pml}, v{ptm}
    """)
    for k in range(8): e(f"v_mul_f32 v{pac+k}, v{pac+k}, v{pml}")
    for k in range(8): e(f"v_add_f32_dpp v{pac+k}, v{pac+k}, v{pac+k} {dq1}")
    for k in range(8): e(f"v_add_f32_dpp v{pac+k}, v{pac+k}, v{pac+k} {dq2}")
    for k in range(4): e(f"v_cndmask_b32 v{pac+k}, v{pac+k}, v{pac+4+k}, {sp(sE3)}")
    for k in range(4): e(f"v_min_u32 v{pac+k}, -2, v{pac+k}")
    e(f"global_store_dwordx4 v{pD1}, {vr(pac)}, {sp(sC)} sc1")
    stamp(6)
    e(f"""
    s_cmp_eq_u32 s{sWAVE}, 1
    s_cbranch_scc1 L_next
    """)

    def reduce_phase(nl, sbase, off0, mid, final_ok):
        poll([f"global_load_dwordx4 {vr(vD+4*i)}, v{pA}, {sp(sbase)} offset:{1024*i+off0} sc1" for i in range(nl)],
             range(vD, vD+4*nl), mid=mid)
        n = nl
        while n > 1:
            for i in range(n//2):
                for k in (0, 2):
                    e(f"v_pk_add_f32 {vr(vD+4*i+k,2)}, {vr(vD+4*i+k,2)}, {vr(vD+4*(i+n//2)+k,2)}")
            n //= 2
        for k in range(4): e(f"v_mov_b32 v{vD+4+k}, v{vD+k}")
        for k in range(4): e(f"v_permlane32_swap_b32 v{vD+k}, v{vD+4+k}")
        for k in range(4): e(f"v_add_f32 v{vD+k}, v{vD+k}, v{vD+4+k}")
        for k in range(4): e(f"v_add_f32 v{vD+k}, v{vD+k}, v{vRES+k}")
        e(f"v_cvt_pk_bf16_f32 v{vD+4}, v{vD}, v{vD+1}\nv_cvt_pk_bf16_f32 v{vD+5}, v{vD+2}, v{vD+3}")
    def publish_x():
        e(f"v_min_u32 v{vD+4}, -2, v{vD+4}\nv_min_u32 v{vD+5}, -2, v{vD+5}")
        st_intra(["s_mov_b64 exec, 0xffffffff",
                  f"global_store_dwordx2 v{pXST}, v[{vD+4}:{vD+5}], {sp(sA)}",
                  "s_mov_b64 exec, -1"])
        e(f"""
        v_lshlrev_b32 v{vRES}, 16, v{vD+4}
        v_and_b32 v{vRES+1}, 0xffff0000, v{vD+4}
        v_lshlrev_b32 v{vRES+2}, 16, v{vD+5}
        v_and_b32 v{vRES+3}, 0xffff0000, v{vD+5}
        v_add_f32 v{vD}, v{vRES}, v{vRES+1}
        v_mul_f32 v{vD+1}, v{vRES}, v{vRES}
        v_add_f32 v{vD+2}, v{vRES+2}, v{vRES+3}
        v_fmac_f32 v{vD+1}, v{vRES+1}, v{vRES+1}
        v_add_f32 v{vD}, v{vD}, v{vD+2}
        v_fmac_f32 v{vD+1}, v{vRES+2}, v{vRES+2}
        v_fmac_f32 v{vD+1}, v{vRES+3}, v{vRES+3}
        v_add_f32_dpp v{vD}, v{vD}, v{vD} {dq1}
        v_add_f32_dpp v{vD+1}, v{vD+1}, v{vD+1} {dq1}
        v_add_f32_dpp v{vD}, v{vD}, v{vD} {dq2}
        v_add_f32_dpp v{vD+1}, v{vD+1}, v{vD+1} {dq2}
        v_min_u32 v{vD}, -2, v{vD}
        v_min_u32 v{vD+1}, -2, v{vD+1}
        """)
        st_intra([f"s_mov_b64 exec, {sp(sE1)}",
                  f"global_store_dwordx2 v{pSST}, v[{vD}:{vD+1}], {sp(sB)}",
                  "s_mov_b64 exec, -1"])
    def gather_x(sxb, ssb):
        for k in range(8): e(f"v_mov_b32 v{vST+k}, 0")
        poll([f"global_load_dwordx4 {vr(vD+4*i)}, v{pXLD}, {sp(sxb)} offset:{512*i} sc1" for i in range(7)] +
             [f"s_mov_b64 exec, {sp(sE2)}",
              f"global_load_dwordx4 {vr(vST)}, v{pSLD}, {sp(ssb)} sc1",
              f"global_load_dwordx4 {vr(vST+4)}, v{pSLD}, {sp(ssb)} offset:16 sc1",
              "s_mov_b64 exec, -1"],
             list(range(vD, vD+28)) + list(range(vST, vST+8)))
        e(f"""
        v_pk_add_f32 {vr(vST,2)}, {vr(vST,2)}, {vr(vST+2,2)}
        v_pk_add_f32 {vr(vST+4,2)}, {vr(vST+4,2)}, {vr(vST+6,2)}
        v_pk_add_f32 {vr(vST,2)}, {vr(vST,2)}, {vr(vST+4,2)}
        """)
    ac0, ac1 = 60, 120
    ror8 = "row_ror:8 row_mask:0xf bank_mask:0xf"
    def ln_gemm():
        for i in range(7):
            e(f"v_mfma_f32_16x16x32_bf16 {vr(ac0)}, {vr(vW+4*i)}, {vr(vD+4*i)}, {vr(ac0) if i else '0'}")
            e(f"v_mfma_f32_16x16x32_bf16 {vr(ac1)}, {vr(vW+28+4*i)}, {vr(vD+4*i)}, {vr(ac1) if i else '0'}")
        s1, s2, t = vST, vST+1, vST+2
        e(f"""
        v_permlane32_swap_b32 v{s1}, v{s2}
        v_add_f32 v{s1}, v{s1}, v{s2}
        v_mov_b32 v{s2}, v{s1}
        v_permlane16_swap_b32 v{s1}, v{s2}
        v_add_f32 v{s1}, v{s1}, v{s2}
        v_add_f32_dpp v{s1}, v{s1}, v{s1} {ror8}
        v_mul_f32 v{s1}, s{sINV}, v{s1}
        v_mov_b32 v{s2}, v{s1}
        v_permlane32_swap_b32 v{s1}, v{s2}
        ; s1 = mean, s2 = E[x^2]
        v_fma_f32 v{s2}, -v{s1}, v{s1}, v{s2}
        v_max_f32 v{s2}, 0, v{s2}
        v_add_f32 v{s2}, s{sEPS}, v{s2}
        v_rsq_f32 v{s2}, v{s2}
        """)
        for k in range(4): e(f"v_add_f32_dpp v{ac0+k}, v{ac1+k}, v{ac0+k} {ror8}")
        for k in range(4): e(f"v_fma_f32 v{ac0+k}, -v{s1}, v{vCS+k}, v{ac0+k}")
        for k in range(4): e(f"v_mul_f32 v{ac0+k}, v{ac0+k}, v{s2}")

    def gu_frags():
        load_w(14, tGU, L_WG, 512, 64)
    def r1_mid():
        chain_consts()
        chain_consts2()
        e(f"s_lshl_b32 s{sT1}, s{sIDX}, 8")
        base(sA, sMB, f"s{sT1}")
        e(f"s_lshl_b32 s{sT1}, s{sIDX}, 3")
        base(sB, sMB, f"s{sT1}", 2*K16)
        base(sC, sMB, 2*K16)
        e(f"s_cmp_eq_u32 s{sIT}, 0\ns_cbranch_scc1 L_r1_skip")
        gu_frags()
        colsum()
        e("L_r1_skip:")
    e("L_r1_wait:")
    e("s_waitcnt vmcnt(0)")
    e("L_r1_go:")
    reduce_phase(8, sD, -4096, r1_mid, False)
    stamp(7)
    publish_x()
    e(f"s_cmp_eq_u32 s{sIT}, 0\ns_cbranch_scc0 L_p4_go")
    e("s_barrier")
    gu_frags()
    colsum()
    e("L_p4_go:")
    gather_x(sMB, sC)
    stamp(8)
    e(f"s_lshl_b32 s{sT1}, s{sIDX}, 7")
    base(sA, sMB, f"s{sT1}", 2*K16 + 4096)
    base(sB, sMB, 2*K16 + 4096)
    ln_gemm()
    e(f"""
    v_permlane32_swap_b32 v{ac0}, v{ac0+2}
    v_permlane32_swap_b32 v{ac0+1}, v{ac0+3}
    v_mul_f32 v{ac0}, s{sNL2E}, v{ac0}
    v_mul_f32 v{ac0+1}, s{sNL2E}, v{ac0+1}
    v_exp_f32 v{ac0}, v{ac0}
    v_exp_f32 v{ac0+1}, v{ac0+1}
    v_add_f32 v{ac0}, 1.0, v{ac0}
    v_add_f32 v{ac0+1}, 1.0, v{ac0+1}
    v_rcp_f32 v{ac0}, v{ac0}
    v_rcp_f32 v{ac0+1}, v{ac0+1}
    v_mul_f32 v{ac0}, v{ac0}, v{ac0+2}
    v_mul_f32 v{ac0+1}, v{ac0+1}, v{ac0+3}
    v_cvt_pk_bf16_f32 v{ac0}, v{ac0}, v{ac0+1}
    v_min_u32 v{ac0}, -2, v{ac0}
    """)
    st_intra([f"s_mov_b64 exec, {sp(sE0)}",
              f"global_store_dword v{pHST}, v{ac0}, {sp(sA)}",
              "s_mov_b64 exec, -1"])
    stamp(9)
    def p5_mid():
        load_w(7, tW32, L_WD, 1024, 128)
        e(f"""
        s_lshr_b32 s{sT1}, s{sIDX}, 1
        s_lshl_b32 s{sT1}, s{sT1}, 14
        s_and_b32 s{sT2}, s{sIDX}, 1
        s_lshl_b32 s{sT2}, s{sT2}, 12
        s_add_u32 s{sT1}, s{sT1}, s{sT2}
        s_lshl_b32 s{sT2}, s{sG}, 9
        s_add_u32 s{sT2}, s{sT2}, s{sT1}
        s_add_u32 s{sT1}, s{sT1}, s{sNEAR}
        """)
        base(sC, sIB, f"s{sT2}", W_A1)
        base(sD, sIB, f"s{sT1}", W_A1)
        e("s_waitcnt lgkmcnt(0)")
    poll([f"global_load_dwordx4 {vr(vD+4*i)}, v{pHLD}, {sp(sB)} offset:{512*i} sc1" for i in range(4)],
         range(vD, vD+16), mid=p5_mid)
    stamp(10)
    for i in range(4):
        e(f"v_mfma_f32_16x16x32_bf16 {vr(ac0)}, {vr(vW+4*i)}, {vr(vD+4*i)}, {vr(ac0) if i else '0'}")
        if i: e(f"v_mfma_f32_16x16x32_bf16 {vr(ac1)}, {vr(vW+12+4*i)}, {vr(vD+4*i)}, {vr(ac1) if i > 1 else '0'}")
    for k in range(4): e(f"v_add_f32_dpp v{ac0+k}, v{ac1+k}, v{ac0+k} {ror8}")
    for k in range(4): e(f"v_min_u32 v{ac0+k}, -2, v{ac0+k}")
    e(f"""
    s_mov_b64 exec, {sp(sE0)}
    global_store_dwordx4 v{pA1}, {vr(ac0)}, {sp(sC)} sc1
    global_store_dwordx4 v{pA1B}, {vr(ac0)}, {sp(sC)} sc1
    s_mov_b64 exec, -1
    """)
    stamp(11)
    def r2_mid():
        load_w(14, tW32, L_WQ, 1024, 128)
        e(f"s_lshl_b32 s{sT1}, s{sIDX}, 8")
        base(sA, sMB, f"s{sT1}", K16)
        e(f"s_lshl_b32 s{sT1}, s{sIDX}, 3")
        base(sB, sMB, f"s{sT1}", 2*K16 + 2048)
        colsum()
    e("s_waitcnt vmcnt(0)")
    reduce_phase(4, sD, 0, r2_mid, True)
    stamp(12)
    e(f"""
    s_cmp_eq_u32 s{sIT}, 1
    s_cbranch_scc1 L_final
    """)
    publish_x()
    e("L_p1:")
    base(sA, sMB, K16)
    base(sB, sMB, 2*K16 + 2048)
    e(f"""
    s_lshl_b32 s{sT1}, s{sG3}, 14
    s_add_u32 s{sT1}, s{sT1}, s{sPAR}
    """)
    base(sQB, sWS, f"s{sT1}", W_Q)
    gather_x(sA, sB)
    stamp(13)
    e(f"s_mov_b32 s{sT0}, 1")
    e("s_branch L_p1_core2")
    e("L_p1_core:")
    e(f"s_mov_b32 s{sT0}, 0")
    e("L_p1_core2:")
    e(f"s_lshl_b32 s{sT1}, s{sIDX}, 5")
    base(sA, sQB, f"s{sT1}")
    e(f"s_lshr_b32 s{sT1}, s{sIDX}, 2\ns_lshl_b32 s{sT1}, s{sT1}, 10")
    base(sB, sQB, f"s{sT1}")
    ln_gemm()
    e(f"""
    s_cmp_eq_u32 s{sT0}, 0
    s_cbranch_scc1 L_first_q
    v_cvt_pk_bf16_f32 v{ac0}, v{ac0}, v{ac0+1}
    v_cvt_pk_bf16_f32 v{ac0+1}, v{ac0+2}, v{ac0+3}
    v_min_u32 v{ac0}, -2, v{ac0}
    v_min_u32 v{ac0+1}, -2, v{ac0+1}
    """)
    st_intra([f"s_mov_b64 exec, {sp(sE0)}",
              f"global_store_dwordx2 v{pQST}, v[{ac0}:{ac0+1}], {sp(sA)}",
              "s_mov_b64 exec, -1"])
    stamp(14)
    def b_mid():
        if diag and diag != 'ovh' and diag[0] == 0: e(f"s_waitcnt lgkmcnt(0)\ns_mov_b32 s100, s{sSTAMP+2*diag[1]}")
        dump_stamps()
        common_consts()
        e(f"s_mov_b32 s{sIT}, 1")
        base(sIB, sWS, ITSTRIDE)
        e(f"v_add_u32 v100, {L_QS}, v{pA}")
    poll([f"global_load_dwordx4 {vr(vD)}, v{pA}, {sp(sB)} sc1"], range(vD, vD+4), mid=b_mid)
    e(f"""
    ds_write_b128 v100, {vr(vD)}
    s_waitcnt lgkmcnt(0)
    s_barrier
    """)
    warm_slots(96, 97, 11)
    e("s_branch L_attn2")
    e("L_first_q:")
    e(f"""
    v_cvt_pk_bf16_f32 v{ac0}, v{ac0}, v{ac0+1}
    v_cvt_pk_bf16_f32 v{ac0+2}, v{ac0+2}, v{ac0+3}
    v_mov_b32 v{ac0+1}, s{sTAG}
    v_mov_b32 v{ac0+3}, s{sTAG}
    v_lshlrev_b32 v100, 1, v{pQST}
    s_lshl_b32 s{sT1}, s{sIDX}, 6
    """)
    base(sA, sQB, f"s{sT1}")
    e(f"""
    s_mov_b64 exec, {sp(sE0)}
    global_store_dwordx4 v100, {vr(ac0)}, {sp(sA)} sc1
    s_mov_b64 exec, -1
    s_lshr_b32 s{sT1}, s{sIDX}, 2
    s_lshl_b32 s{sT1}, s{sT1}, 11
    """)
    base(sB, sQB, f"s{sT1}")
    stamp(14)
    common_consts()
    base(sC, sWS, W_FLAG)
    e(f"""
    v_lshlrev_b32 v100, 3, v{vLANE}
    v_add_u32 v100, {L_QS}, v100
    {"s_waitcnt vmcnt(0)" if q1wait else ""}
    L_q1poll:
    global_load_dwordx4 {vr(vD)}, v{pA}, {sp(sB)} sc1
    global_load_dwordx4 {vr(vD+4)}, v{pA}, {sp(sB)} offset:1024 sc1
    global_load_dwordx4 {vr(vD+8)}, v{pA}, {sp(sC)} sc1
    global_load_dwordx4 {vr(vD+12)}, v{pA}, {sp(sC)} offset:1024 sc1
    s_add_u32 s{sSPIN}, s{sSPIN}, 1
    s_cmp_gt_u32 s{sSPIN}, {SPIN_LIMIT}
    s_cbranch_scc1 L_exit
    s_waitcnt vmcnt(0)
    """)
    for k in range(1, 16, 2): e(f"v_xor_b32 v{vD+k}, s{sTAG}, v{vD+k}")
    e(f"""
    v_or3_b32 v{vT}, v{vD+1}, v{vD+3}, v{vD+5}
    v_or3_b32 v{vT}, v{vD+7}, v{vD+9}, v{vT}
    v_or3_b32 v{vT}, v{vD+11}, v{vD+13}, v{vT}
    v_or_b32 v{vT}, v{vT}, v{vD+15}
    v_cmp_ne_u32 vcc, 0, v{vT}
    s_cbranch_vccnz L_q1poll
    v_mov_b32 v{vD+1}, v{vD+2}
    v_mov_b32 v{vD+5}, v{vD+6}
    ds_write_b64 v100, v[{vD}:{vD+1}]
    ds_write_b64 v100, v[{vD+4}:{vD+5}] offset:512
    v_lshl_or_b32 v{vD+8}, v{vD+10}, 4, v{vD+8}
    v_lshl_or_b32 v{vD+12}, v{vD+14}, 4, v{vD+12}
    s_mov_b32 s{sT1}, 0
    s_mov_b32 s{sT2}, 0
    """)
    for k in range(4):
        e(f"""
        v_readlane_b32 s{sT0}, v{vD+8}, {k}
        s_lshl_b32 s{sT3}, s{sT0}, {8*k}
        s_or_b32 s{sT1}, s{sT1}, s{sT3}
        s_and_b32 s{sT3}, s{sT0}, 7
        s_bitset1_b32 s{sT2}, s{sT3}
        s_lshr_b32 s{sT3}, s{sT0}, 4
        s_bitset1_b32 s{sT2}, s{sT3}
        """)
    e(f"""
    v_and_b32 v{vD+9}, 3, v{vLANE}
    v_lshlrev_b32 v{vD+9}, 3, v{vD+9}
    v_lshrrev_b32 v{vD+9}, v{vD+9}, s{sT1}
    v_and_b32 v{vD+9}, 0xff, v{vD+9}
    v_xor_b32 v{vD+8}, v{vD+8}, v{vD+9}
    v_xor_b32 v{vD+12}, v{vD+12}, v{vD+9}
    v_or_b32 v{vD+8}, v{vD+8}, v{vD+12}
    v_cmp_ne_u32 vcc, 0, v{vD+8}
    s_cmp_eq_u32 s{sT2}, 0xff
    s_cselect_b32 s{sT1}, 1, 0
    s_cmp_eq_u64 vcc, 0
    s_cselect_b32 s{sT1}, s{sT1}, 0
    v_mov_b32 v102, s{sT1}
    v_mov_b32 v103, {L_FL}
    ds_write_b32 v103, v102
    v_add_u32 v100, {L_KV0}, v{pA}
    s_mov_b32 s{sFAST}, s{sT1}
    """)
    set_gx()
    stamp(15)
    e("s_waitcnt lgkmcnt(0)\ns_barrier")
    e(f"s_cmp_lt_u32 s{sIDX}, 28\ns_cbranch_scc1 L_late_w\nL_late_w_back:")
    warm_slots(96, 97, 11)
    for i in range(32):
        e(f"ds_read_b128 {vr(vKF+4*i)}, v100 offset:{1024*i}")
        if i % 8 == 7: e("s_waitcnt lgkmcnt(4)")
    e("s_waitcnt lgkmcnt(0)\ns_branch L_attn2")
    e("L_gather:")
    if not mid_gather:
        throttle[0] = thr
        dma_gu(); dma_wd()
        throttle[0] = None
    e("s_branch L_bar4w")
    e("L_late_w:")
    if not wo_early: dma_wo(96, 97)
    if not mid_gather: prefetch_mlp(96, 97, 11)
    e("s_branch L_late_w_back")
    e("L_final:")
    e(f"""
    s_lshl_b32 s{sT1}, s{sG}, 2
    s_lshl_b32 s{sT2}, 15, s{sT1}
    s_mul_i32 s{sT1}, s{sG}, {896-32}
    s_lshl_b32 s{sT3}, s{sIDX}, 5
    s_add_u32 s{sT1}, s{sT1}, s{sT3}
    """)
    base(sA, sOUT, f"s{sT1}")
    e(f"""
    s_mov_b32 exec_lo, s{sT2}
    s_mov_b32 exec_hi, 0
    global_store_dwordx2 v{pXST}, v[{vD+4}:{vD+5}], {sp(sA)}
    s_mov_b64 exec, -1
    """)
    stamp(13)
    e(f"""
    s_cmp_eq_u32 s2, 0
    s_cbranch_scc0 L_noepoch
    v_mov_b32 v100, {W_EPOCH}
    v_mov_b32 v101, s{sTAG}
    s_mov_b64 exec, 1
    global_store_dword v100, v101, {sp(sWS)}
    s_mov_b64 exec, -1
    """)
    if diag:
        e("s_waitcnt lgkmcnt(0)")
        if diag == 'ovh': e(f"s_mov_b32 s100, s{sSTAMP}")
        elif diag[0] == 1: e(f"s_mov_b32 s100, s{sSTAMP+2*diag[1]}")
        e(f"""
        s_add_u32 s100, s100, 6000
        L_dspin:
        s_memrealtime {sp(sT0)}
        s_waitcnt lgkmcnt(0)
        s_sub_u32 s{sT2}, s{sT0}, s100
        s_cmp_lt_i32 s{sT2}, 0
        s_cbranch_scc1 L_dspin
        """)
    e(f"""
    L_noepoch:
    """)
    dump_stamps()
    e("L_exit:")
    e("s_endpgm")
    for slow, instrs, back in ool:
        e(f"{slow}:")
        for i in instrs: e(i)
        e(f"s_branch {back}")

    head = []
    for line in open(REF):
        if line.startswith(';') and '@launch' not in line: head.append(line.rstrip())
        elif not line.startswith(';'): break
    src = "\n".join(head) + f"""
; @launch grid=(256,1,1) block=(512,1,1) lds={LDS_BYTES}
.amdgcn_target "amdgcn-amd-amdhsa--gfx950"
.text
.globl {KNAME}
.p2align 8
.type {KNAME},@function
{KNAME}:
""" + a.text() + f""".section .rodata,"a"
.p2align 6
.amdhsa_kernel {KNAME}
  .amdhsa_next_free_vgpr 256
  .amdhsa_next_free_sgpr 102
  .amdhsa_accum_offset 256
  .amdhsa_group_segment_fixed_size 0
  .amdhsa_kernarg_size 96
  .amdhsa_user_sgpr_count 2
  .amdhsa_user_sgpr_kernarg_segment_ptr 1
  .amdhsa_system_sgpr_workgroup_id_x 1
.end_amdhsa_kernel
"""
    return src

if __name__ == "__main__":
    out = sys.argv[1] if len(sys.argv) > 1 else "interleave_layers__sliding_block_cached__glu_gated_glu__decode.s"
    kw = dict(eval(x) for x in sys.argv[2:] if x.startswith("("))
    open(out, "w").write(gen(stamps=("stamps" in sys.argv), **kw))
```
